```python
import torch

def _softmax(x, axis=-1):
    return torch.softmax(x, dim=axis)

def _gelu(x):
    return torch.nn.functional.gelu(x, approximate='tanh')

def _silu(x):
    return torch.nn.functional.silu(x)

def _sigmoid(x):
    return torch.sigmoid(x)

def _layernorm(x, axis=-1, eps=1e-05):
    m = x.mean(dim=axis, keepdim=True)
    v = x.var(dim=axis, keepdim=True, unbiased=False)
    return (x - m) / torch.sqrt(v + eps)

def _scatter_add(tgt, idx, src, axis=0):
    return tgt.clone().index_add_(axis, idx, src)

def _segment_sum(src, seg, n):
    out = torch.zeros((n,) + src.shape[1:], dtype=src.dtype)
    return out.index_add_(0, seg, src)

def _pad(x, pw):
    flat = tuple((v for pair in reversed(pw) for v in pair))
    return torch.nn.functional.pad(x, flat)
kernel_name = 'adaLN_cond__memory_aug_recurrent_mem_tr__glu_gated_geglu__prompt'

def setup_inputs():

    _w = lambda a: (lambda t: t.to(torch.bfloat16) if t.is_floating_point() else t)(torch.as_tensor(a))

    def _A_setup():
        B, S, Dm = (1, 2048, 640)
        H, Dh = (32, 192)
        M, seg = (8, 32)
        seg = min(seg, S)
        S = S // seg * seg
        return {'x': _w((lambda *s: torch.randn(*s, dtype=torch.bfloat16) * 0.05)(B, S, Dm)), 'mem0': _w((lambda *s: torch.randn(*s, dtype=torch.bfloat16) * 0.8)(B, M, Dm)), 'Wq': _w((lambda *s: torch.randn(*s, dtype=torch.bfloat16) * 0.8)(Dm, H, Dh) * Dm ** (-0.5)), 'Wk': _w((lambda *s: torch.randn(*s, dtype=torch.bfloat16) * 0.8)(Dm, H, Dh) * Dm ** (-0.5)), 'Wv': _w((lambda *s: torch.randn(*s, dtype=torch.bfloat16) * 0.8)(Dm, H, Dh) * Dm ** (-0.5)), 'Wo': _w((lambda *s: torch.randn(*s, dtype=torch.bfloat16) * 0.8)(H, Dh, Dm) * (H * Dh) ** (-0.5)), 'seg_len': seg}
    _A_in = _A_setup()

    def _B_setup():
        B, S, Dm, Df = (1, 2048, 640, 1536)
        return {'x': _w((lambda *s: torch.randn(*s, dtype=torch.bfloat16) * 0.05)(B, S, Dm)), 'w_gate': _w((lambda *s: torch.randn(*s, dtype=torch.bfloat16) * 0.4)(Dm, Df) * Dm ** (-0.5)), 'w_up': _w((lambda *s: torch.randn(*s, dtype=torch.bfloat16) * 0.4)(Dm, Df) * Dm ** (-0.5)), 'w_down': _w((lambda *s: torch.randn(*s, dtype=torch.bfloat16) * 0.4)(Df, Dm) * Df ** (-0.5))}
    _B_in = _B_setup()
    return {'A_x': _A_in['x'], 'A_mem0': _A_in['mem0'], 'A_Wq': _A_in['Wq'], 'A_Wk': _A_in['Wk'], 'A_Wv': _A_in['Wv'], 'A_Wo': _A_in['Wo'], 'A_seg_len': _A_in['seg_len'], 'B_x': _B_in['x'], 'B_w_gate': _B_in['w_gate'], 'B_w_up': _B_in['w_up'], 'B_w_down': _B_in['w_down'], 'c': _w((lambda *s: torch.randn(*s, dtype=torch.bfloat16) * 0.2)(1, 640) * 8.0), 'w_mod': _w((lambda *s: torch.randn(*s, dtype=torch.bfloat16) * 0.2)(640, 6 * 640) * 640 ** (-0.5) * 8.0)}

def reference(A_x, A_mem0, A_Wq, A_Wk, A_Wv, A_Wo, A_seg_len, B_x, B_w_gate, B_w_up, B_w_down, c, w_mod):

    def _A_ref(x, mem0, Wq, Wk, Wv, Wo, seg_len):
        B, S, Dm = x.shape
        H, Dh = (Wq.shape[1], Wq.shape[2])
        M = mem0.shape[1]
        scale = Dh ** (-0.5)
        n_seg = S // seg_len
        L = M + seg_len
        idx = torch.arange(L)
        mask = (idx[:, None] < M) | (idx[:, None] >= idx[None, :])
        mem = mem0
        outs = []
        for s in range(n_seg):
            xs = x[:, s * seg_len:(s + 1) * seg_len, :].clone()
            h = torch.concatenate([mem, xs], axis=1)
            q = torch.einsum('btd,dhe->bhte', h, Wq)
            k = torch.einsum('btd,dhe->bhte', h, Wk)
            v = torch.einsum('btd,dhe->bhte', h, Wv)
            scores = torch.einsum('bhqe,bhke->bhqk', q, k) * scale
            scores = torch.where(mask[None, None], scores, -1000000000.0)
            p = _softmax(scores, axis=-1)
            o = torch.einsum('bhqk,bhke->bhqe', p, v)
            o = torch.einsum('bhte,hed->btd', o, Wo)
            mem = o[:, :M, :].clone()
            outs.append(o[:, M:, :])
        return torch.concatenate(outs, axis=1)

    def _B_ref(x, w_gate, w_up, w_down):
        g = torch.einsum('bsd,df->bsf', x, w_gate)
        u = torch.einsum('bsd,df->bsf', x, w_up)
        h = _gelu(g) * u
        return torch.einsum('bsf,fd->bsd', h, w_down)
    x = A_x
    mod = (_silu(c) @ w_mod).reshape(c.shape[0], 6, 1, -1)
    sa, ca, ga, sb, cb, gb = (mod[:, 0].clone(), mod[:, 1].clone(), mod[:, 2].clone(), mod[:, 3].clone(), mod[:, 4].clone(), mod[:, 5].clone())
    h = _layernorm(x, axis=-1) * (1 + ca) + sa
    x = x + ga * _A_ref(h, A_mem0, A_Wq, A_Wk, A_Wv, A_Wo, A_seg_len)
    h = _layernorm(x, axis=-1) * (1 + cb) + sb
    x = x + gb * _B_ref(h, B_w_gate, B_w_up, B_w_down)
    return x
```

```python
import re

REG_RE = re.compile(r'(?<![\w\.])([vas])(?:(\d+)|\[(\d+):(\d+)\])(?![\w])')
TRANS = ('v_exp_f32','v_log_f32','v_rcp_f32','v_rsq_f32','v_sqrt_f32','v_sin_f32','v_cos_f32','v_rcp_iflag_f32')

def regs_of(tok):
    out = []
    for m in REG_RE.finditer(tok):
        k = m.group(1)
        if m.group(2) is not None:
            out.append((k, int(m.group(2))))
        else:
            for i in range(int(m.group(3)), int(m.group(4)) + 1):
                out.append((k, i))
    t = re.sub(r'\[.*?\]', '', tok)
    if re.search(r'\bvcc\b', t): out += [('s', 106), ('s', 107)]
    if re.search(r'\bvcc_lo\b', t): out += [('s', 106)]
    if re.search(r'\bvcc_hi\b', t): out += [('s', 107)]
    if re.search(r'\bexec\b', t): out += [('s', 126), ('s', 127)]
    if re.search(r'\bm0\b', t): out += [('s', 124)]
    return out

class Ins:
    __slots__ = ('text','mn','ops','kind','dst','src','passes','ws','dpp','srcC','srcAB','wide_store','label','target')
    def __init__(self, text):
        self.text = text
        t = text.split(';')[0].strip()
        self.label = None; self.target = None
        self.dst = []; self.src = []; self.passes = 0; self.ws = 1; self.dpp = False
        self.srcC = []; self.srcAB = []; self.wide_store = False
        if t.endswith(':'):
            self.kind = 'label'; self.label = t[:-1]; self.ws = 0; self.mn = ''; return
        if t == '' or t.startswith('.'):
            self.kind = 'none'; self.ws = 0; self.mn = ''; return
        parts = t.split(None, 1)
        mn = parts[0]; self.mn = mn
        rest = parts[1] if len(parts) > 1 else ''
        ops = [o.strip() for o in rest.split(',')] if rest else []
        self.ops = ops
        R = regs_of
        if mn.startswith('v_mfma'):
            self.kind = 'mfma'
            self.dst = R(ops[0]); self.srcAB = R(ops[1]) + R(ops[2]); self.srcC = R(ops[3])
            self.src = self.srcAB + self.srcC
            self.passes = 8 if '32x32' in mn else 4
        elif mn.startswith('v_'):
            self.kind = 'valu'
            self.dpp = ('row_' in t) or ('quad_perm' in t) or ('_dpp' in mn)
            base = mn.replace('_e32','').replace('_e64','').replace('_dpp','')
            if base.startswith('v_cmp'):
                self.dst = R(ops[0]); self.src = sum([R(o) for o in ops[1:]], [])
            elif base in ('v_add_co_u32','v_sub_co_u32','v_subrev_co_u32','v_addc_co_u32','v_subb_co_u32','v_div_scale_f32','v_mad_u64_u32'):
                self.dst = R(ops[0]) + R(ops[1]); self.src = sum([R(o) for o in ops[2:]], [])
            elif base.startswith('v_permlane') and 'swap' in base:
                self.dst = R(ops[0]) + R(ops[1]); self.src = R(ops[0]) + R(ops[1])
            elif base.startswith('v_fmac') or base.startswith('v_pk_fmac') or base.startswith('v_dot2c') or base == 'v_writelane_b32':
                self.dst = R(ops[0]); self.src = sum([R(o) for o in ops], [])
            else:
                self.dst = R(ops[0]); self.src = sum([R(o) for o in ops[1:]], [])
        elif mn.startswith('ds_'):
            self.kind = 'ds'
            mo = re.search(r'offset:(\d+)', t)
            if mo: assert int(mo.group(1)) < 65536, text
            if mn.startswith('ds_read') or mn.startswith('ds_bpermute') or mn.startswith('ds_permute') or mn.startswith('ds_swizzle') or '_rtn' in mn:
                self.dst = R(ops[0]); self.src = sum([R(o) for o in ops[1:]], [])
            else:
                self.src = sum([R(o) for o in ops], [])
        elif mn.startswith('buffer_') or mn.startswith('global_'):
            self.kind = 'vmem'
            mo = re.search(r'offset:(\d+)', t)
            if mo: assert int(mo.group(1)) < 4096, text
            isbuf = mn.startswith('buffer_')
            if '_load' in mn:
                if ' lds' in t or '_lds_' in mn:
                    self.src = sum([R(o) for o in ops], []) + [('s',124)]
                else:
                    self.dst = R(ops[0]); self.src = sum([R(o) for o in ops[1:]], [])
            elif '_store' in mn:
                self.src = sum([R(o) for o in ops], [])
                if 'x3' in mn or 'x4' in mn:
                    self.wide_store = R(ops[0]) if isbuf else R(ops[1])
            elif '_atomic' in mn:
                self.src = sum([R(o) for o in ops], [])
                if 'sc0' in t: self.dst = R(ops[0])
            else:
                pass
        elif mn.startswith('s_'):
            self.kind = 'salu'
            if mn == 's_nop':
                self.ws = int(ops[0], 0) + 1
            elif mn.startswith('s_cbranch') or mn == 's_branch':
                self.target = ops[0]
            elif mn.startswith('s_cmp') or mn in ('s_waitcnt','s_barrier','s_endpgm','s_sleep','s_setprio','s_bitcmp0_b32','s_bitcmp1_b32'):
                self.src = sum([R(o) for o in ops], [])
            else:
                self.dst = R(ops[0]) if ops else []; self.src = sum([R(o) for o in ops[1:]], [])
                if 'saveexec' in mn: self.dst = self.dst + [('s',126),('s',127)]
        else:
            raise ValueError('unknown instruction: ' + text)

def need(p, c):
    n = 0
    pd = set(p.dst); cs = set(c.src); cd = set(c.dst)
    vg = lambda s: {r for r in s if r[0] in 'va'}
    sg = lambda s: {r for r in s if r[0] == 's'}
    if p.kind == 'valu':
        if c.kind == 'mfma' and vg(pd) & cs: n = max(n, 2)
        if c.kind == 'mfma' and (('s',126) in pd): n = max(n, 4)
        if c.kind == 'valu':
            if p.mn.replace('_e32','') in TRANS and (vg(pd) & cs): n = max(n, 1)
            if sg(pd) & cs: n = max(n, 4 if 'lane' in c.mn else 2)
            if vg(pd) & cs:
                if c.dpp: n = max(n, 2)
                if c.mn.startswith('v_permlane'): n = max(n, 2)
                if c.mn.startswith('v_readlane') or c.mn.startswith('v_readfirstlane'): n = max(n, 1)
            if ('s',126) in pd: n = max(n, 5 if c.dpp else 4)
        if c.kind == 'vmem' and (sg(pd) & cs): n = max(n, 5)
        if c.kind == 'salu' and (sg(pd) & cs): n = max(n, 1)
    if p.kind == 'mfma':
        big = p.passes == 8
        if c.kind == 'mfma':
            if pd & set(c.srcAB): n = max(n, 12 if big else 8)
            if pd & set(c.srcC):
                if not (c.srcC == p.dst and c.mn == p.mn): n = max(n, 10 if big else 6)
            if (pd & cd) and not (set(c.srcC) == pd): n = max(n, 10 if big else 6)
        elif c.kind in ('valu','vmem','ds'):
            if pd & (cs | cd): n = max(n, 12 if big else 8)
            if c.kind == 'valu' and (set(p.srcC) & cd): n = max(n, 7 if big else 3)
    if p.kind == 'vmem' and p.wide_store:
        if set(p.wide_store) & cd: n = max(n, 2)
    if p.kind == 'salu' and (('s',124) in pd):
        if c.kind == 'vmem' and ('s',124) in cs: n = max(n, 1)
    return n

class Kern:
    def __init__(self):
        self.ins = []
    def __call__(self, s):
        for line in s.split('\n'):
            if line.strip() == '': continue
            self.ins.append(Ins(line.strip()))
    def label(self, l): self('%s:' % l)
    def _check_seq(self, prev, nxt):
        extra = 0
        pw = [i for i in prev if i.ws > 0][-20:]
        d_after = 0
        for c in nxt:
            if c.ws == 0: continue
            d = d_after
            for p in reversed(pw):
                r = need(p, c)
                if r > d: extra = max(extra, r - d)
                d += p.ws
                if d > 20: break
            d_after += c.ws
            if d_after > 20: break
            if c.target and c.mn == 's_branch': break
        return extra
    def finalize(self):
        out = []
        for c in self.ins:
            if c.ws > 0:
                d = 0; extra = 0
                for p in reversed(out):
                    if p.ws == 0: continue
                    r = need(p, c)
                    if r > d: extra = max(extra, r - d)
                    d += p.ws
                    if d > 20: break
                while extra > 0:
                    k = min(extra, 16)
                    out.append(Ins('s_nop %d' % (k - 1))); extra -= k
            out.append(c)
        labels = {}
        for idx, c in enumerate(out):
            if c.label: labels[c.label] = idx
        res = []
        for idx, c in enumerate(out):
            if c.target and c.target in labels:
                t = labels[c.target]
                extra = self._check_seq(res, out[t:t+40])
                extra = max(0, extra - 1)
                while extra > 0:
                    k = min(extra, 16)
                    res.append(Ins('s_nop %d' % (k - 1))); extra -= k
            res.append(c)
        txt = []
        for c in res:
            txt.append(c.text if c.label else '  ' + c.text)
        return '\n'.join(txt) + '\n'

def kernel_text(name, body, nvgpr, accum, nsgpr=102):
    return f""".text
.globl {name}
.p2align 8
.type {name},@function
{name}:
{body}
"""
def kernel_desc(name, nvgpr, accum, nsgpr=102):
    return f""".section .rodata,"a"
.p2align 6
.amdhsa_kernel {name}
  .amdhsa_next_free_vgpr {nvgpr}
  .amdhsa_next_free_sgpr {nsgpr}
  .amdhsa_accum_offset {accum}
  .amdhsa_group_segment_fixed_size 0
  .amdhsa_kernarg_size 128
  .amdhsa_user_sgpr_count 2
  .amdhsa_user_sgpr_kernarg_segment_ptr 1
  .amdhsa_system_sgpr_workgroup_id_x 1
  .amdhsa_float_denorm_mode_32 3
.end_amdhsa_kernel
"""
```

```python
from asmgen import *

KN = "adaLN_cond__memory_aug_recurrent_mem_tr__glu_gated_geglu__prompt"

MOD   = 0x0000000
MEMB  = 0x0010000
SCB   = 0x0040000
VB    = 0x0100000
PB    = 0x0180000
XB    = 0x0400000
SENT_LO = MEMB
SENT_HI = XB + 4*32*4*640
KMA   = 0x0500000
VMA   = 0x0C00000
H1F   = 0x1300000
H2F   = 0x1600000
X1    = 0x1900000
ACTF  = 0x1C00000
QF    = 0x3000000
KF    = 0x5000000
VF    = 0x7000000
OF    = 0x9000000
PART  = 0xB000000
WS_SIZE = 0x10000000

KA = dict(x=0, mem0=8, Wq=16, Wk=24, Wv=32, Wo=40, seg=48, bx=56, wg=64, wu=72, wd=80, c=88, wmod=96, out=104, dbg=112, ws=120)
SZ = dict(x=2048*640*2, mem0=8*640*2, Wq=640*6144*2, Wk=640*6144*2, Wv=640*6144*2, Wo=6144*640*2,
          wg=640*1536*2, wu=640*1536*2, wd=1536*640*2, c=640*2, wmod=640*3840*2, out=2048*640*2, dbg=256, ws=WS_SIZE)

def load_srds(k, specs, tmp0):
    for name, sb in specs:
        k(f's_load_dwordx2 s[{sb}:{sb+1}], s[0:1], {KA[name]}')
    k('s_waitcnt lgkmcnt(0)')
    for name, sb in specs:
        k(f's_and_b32 s{sb+1}, s{sb+1}, 0xffff')
        k(f's_mov_b32 s{sb+2}, {SZ[name]}')
        k(f's_mov_b32 s{sb+3}, 0x00020000')

class VmQ:
    def __init__(self, k): self.k = k; self.q = []
    def issue(self, tag): self.q.append(tag)
    def wait(self, tag):
        idx = [i for i, t in enumerate(self.q) if t == tag]
        if not idx: return
        last = idx[-1]
        n = len(self.q) - 1 - last
        assert n <= 63
        self.k(f's_waitcnt vmcnt({n})')
        self.q = self.q[last+1:]
    def wait_all(self):
        self.k('s_waitcnt vmcnt(0)'); self.q = []

def round_bf16_pair(k, a, b, t):
    k(f'v_cvt_pk_bf16_f32 v{t}, v{a}, v{b}')
    k(f'v_lshlrev_b32 v{a}, 16, v{t}')
    k(f'v_and_b32 v{b}, 0xffff0000, v{t}')

def round_bf16(k, a, t=None):
    k(f'v_cvt_pk_bf16_f32 v{a}, v{a}, v{a}')
    k(f'v_lshlrev_b32 v{a}, 16, v{a}')
```

```python
from common import *

W0 = 16
ACT0 = 80

def gemm_core(k, nk, RT, CT, swap, tr_addr, tr_off, issue_dma, issue_act, stage_bytes, vq):
    nst = nk // 2
    def wreg(n, ct): return W0 + (n & 1) * CT * 4 + ct * 4
    def areg(n, rt): return ACT0 + (n % 3) * RT * 4 + rt * 4
    def reads(n):
        st = n >> 1; kk = n & 1
        out = []
        for ct in range(CT):
            for hf in range(2):
                r = wreg(n, ct) + 2 * hf
                off = (st & 1) * stage_bytes + tr_off(ct, kk, hf)
                out.append(f'ds_read_b64_tr_b16 v[{r}:{r+1}], v{tr_addr[ct]} offset:{off}')
        return out
    issue_dma(0)
    issue_act(0, areg(0, 0)); issue_act(1, areg(1, 0))
    if nst > 1: issue_dma(1)
    vq.wait('d0')
    k('s_barrier')
    for r in reads(0): k(r)
    for n in range(nk):
        st = n >> 1
        k('s_waitcnt lgkmcnt(0)')
        if n & 1:
            if st + 1 < nst:
                vq.wait(f'd{st+1}')
                k('s_barrier')
                if st + 2 < nst: issue_dma(st + 2)
        if n + 2 < nk: issue_act(n + 2, areg(n + 2, 0))
        vq.wait(f'a{n}')
        rd = reads(n + 1) if n + 1 < nk else []
        i = 0
        for ct in range(CT):
            for rt in range(RT):
                a = (rt * CT + ct) * 4
                w = wreg(n, ct); x = areg(n, rt)
                A, B = (f'v[{x}:{x+3}]', f'v[{w}:{w+3}]') if swap else (f'v[{w}:{w+3}]', f'v[{x}:{x+3}]')
                C = '0' if n == 0 else f'a[{a}:{a+3}]'
                k(f'v_mfma_f32_16x16x32_bf16 a[{a}:{a+3}], {A}, {B}, {C}')
                if i < len(rd): k(rd[i])
                i += 1
        while i < len(rd):
            k(rd[i]); i += 1

def common_ids(k):
    k('''
v_lshrrev_b32 v1, 6, v0
v_and_b32 v2, 63, v0             ; lane
v_readfirstlane_b32 s4, v1       ; wave
v_lshrrev_b32 v3, 4, v2          ; qd
v_and_b32 v4, 15, v2             ; i = l&15
''')

def tr_addrs256(k, CT, first):
    k(f'''
v_lshrrev_b32 v5, 2, v4          ; i>>2
v_lshl_add_u32 v5, v3, 2, v5
v_and_b32 v6, 7, v5              ; r7
v_lshlrev_b32 v7, 8, v5          ; row*256
v_and_b32 v8, 3, v4
v_lshl_add_u32 v7, v8, 3, v7     ; + (i&3)*8
''')
    for ct in range(CT):
        k(f'v_xor_b32 v8, {ct}, v6')
        k(f'v_lshl_add_u32 v{first+ct}, v8, 5, v7')

def dma_voff256(k, ldw, dst):
    k(f'''
v_lshrrev_b32 v5, 1, v4          ; p>>1
v_xor_b32 v5, v5, v3             ; ^ row (0..3)
v_lshlrev_b32 v5, 1, v5
v_and_b32 v6, 1, v4
v_or_b32 v5, v5, v6
v_lshlrev_b32 v5, 4, v5          ; chunk*16
v_mul_u32_u24 v6, {ldw}, v3
v_add_u32 v{dst}, v5, v6
v_xor_b32 v{dst+1}, 128, v{dst}
''')

def acc_to_v(k, a, v, n=4):
    for i in range(n): k(f'v_accvgpr_read_b32 v{v+i}, a{a+i}')

def k2_qkv():
    k = Kern(); vq = VmQ(k)
    RT, CT = 4, 8
    k('s_cmp_ge_u32 s2, 1152')
    k('s_cbranch_scc1 K2_end')
    k(f's_load_dwordx2 s[8:9], s[0:1], {KA["ws"]}')
    k('''
s_mul_i32 s5, s2, 29128
s_lshr_b32 s5, s5, 22            ; rowg
s_mul_i32 s6, s5, 144
s_sub_u32 s6, s2, s6             ; colt
s_mul_i32 s7, s6, 1366
s_lshr_b32 s7, s7, 16
s_mul_i32 s20, s7, 48
s_sub_u32 s20, s6, s20
s_lshl_b32 s21, s7, 3
s_add_u32 s21, s21, 16
''')
    k(f'''
s_load_dwordx4 s[24:27], s[0:1], 16
s_load_dwordx2 s[28:29], s[0:1], 32
s_waitcnt lgkmcnt(0)
s_cmp_eq_u32 s7, 1
s_cselect_b32 s12, s26, s24
s_cselect_b32 s13, s27, s25
s_cmp_eq_u32 s7, 2
s_cselect_b32 s12, s28, s12
s_cselect_b32 s13, s29, s13
s_and_b32 s13, s13, 0xffff
s_mov_b32 s14, {SZ["Wq"]}
s_mov_b32 s15, 0x00020000
s_and_b32 s9, s9, 0xffff
s_mov_b32 s10, {WS_SIZE}
s_mov_b32 s11, 0x00020000
''')
    common_ids(k)
    tr_addrs256(k, CT, 8+0) if False else None
    qkv_tile(k, vq, RT, CT)
    k('K2_end:')
    k('s_endpgm')
    return k.finalize(), 256, 128

def qkv_tile(k, vq, RT, CT):
    k('''
v_lshrrev_b32 v5, 2, v4          ; i>>2
v_lshl_add_u32 v5, v3, 2, v5
v_and_b32 v6, 7, v5              ; r7
v_lshlrev_b32 v7, 8, v5          ; row*256
v_and_b32 v5, 3, v4
v_lshl_add_u32 v7, v5, 3, v7     ; + (i&3)*8
''')
    for ct in range(CT):
        k(f'v_xor_b32 v5, {ct}, v6')
        k(f'v_lshl_add_u32 v{8+ct}, v5, 5, v7')
    ldw = 12288
    k(f'''
v_lshrrev_b32 v5, 1, v4          ; p>>1
v_xor_b32 v5, v5, v3             ; ^ row (0..3)
v_lshlrev_b32 v5, 1, v5
v_and_b32 v6, 1, v4
v_or_b32 v5, v5, v6
v_lshlrev_b32 v5, 4, v5          ; chunk*16
v_mul_u32_u24 v6, {ldw}, v3
v_add_u32 v5, v5, v6
v_xor_b32 v6, 128, v5
v_lshlrev_b32 v7, 4, v2          ; lane*16
''')
    k(f'''
s_mul_i32 s30, s4, {16*ldw}
s_lshl_b32 s31, s20, 8
s_add_u32 s30, s30, s31
s_lshl_b32 s31, s4, 12
s_lshl_b32 s32, s5, 4
s_lshl_b32 s33, s4, 2
s_add_u32 s32, s32, s33
s_mul_i32 s32, s32, 20480
s_add_u32 s32, s32, {H1F}
''')
    def issue_dma(st):
        for j in range(4):
            k(f's_add_u32 s34, s30, {(st*64 + 4*j)*ldw}')
            k(f's_add_u32 m0, s31, {(st&1)*16384 + j*1024}')
            k(f'buffer_load_dwordx4 v{5 + (j&1)}, s[12:15], s34 offen lds')
            vq.issue(f'd{st}')
    def issue_act(n, rb):
        for rt in range(RT):
            k(f's_add_u32 s35, s32, {rt*20480 + n*1024}')
            k(f'buffer_load_dwordx4 v[{rb+4*rt}:{rb+4*rt+3}], v7, s[8:11], s35 offen')
            vq.issue(f'a{n}')
    tr_addr = [8+ct for ct in range(CT)]
    tr_off = lambda ct, kk, hf: (kk*32 + hf*16)*256
    k('s_cmp_eq_u32 s7, 2')
    k('s_cbranch_scc1 K2_V')
    q0 = list(vq.q)
    gemm_core(k, 20, RT, CT, False, tr_addr, tr_off, issue_dma, issue_act, 16384, vq)
    k(f'''
s_mov_b32 s36, {QF}
s_mov_b32 s37, {KF}
s_cmp_eq_u32 s7, 1
s_cselect_b32 s36, s37, s36
s_lshl_b32 s37, s5, 3
s_lshl_b32 s38, s4, 1
s_add_u32 s37, s37, s38          ; seg0
s_mul_i32 s37, s37, {32*12288}
s_add_u32 s36, s36, s37
''')
    for pr in range(4):
        k(f'''
s_lshl_b32 s38, s20, 2
s_add_u32 s38, s38, {pr}         ; gp
s_mul_i32 s39, s38, 10923
s_lshr_b32 s39, s39, 16
s_mul_i32 s40, s39, 6
s_sub_u32 s40, s38, s40          ; pair
s_mul_i32 s39, s39, 12288
s_lshl_b32 s40, s40, 10
s_add_u32 s39, s39, s40
s_add_u32 s39, s39, s36
''')
        for rt in range(RT):
            a0 = (rt*CT + 2*pr)*4; a1 = (rt*CT + 2*pr+1)*4
            t = 16 + (rt&1)*12
            acc_to_v(k, a0, t); acc_to_v(k, a1, t+4)
            k(f'v_cvt_pk_bf16_f32 v{t+8}, v{t}, v{t+1}')
            k(f'v_cvt_pk_bf16_f32 v{t+9}, v{t+2}, v{t+3}')
            k(f'v_cvt_pk_bf16_f32 v{t+10}, v{t+4}, v{t+5}')
            k(f'v_cvt_pk_bf16_f32 v{t+11}, v{t+6}, v{t+7}')
            k(f's_add_u32 s40, s39, {(rt>>1)*32*12288 + (rt&1)*6144}')
            k(f'buffer_store_dwordx4 v[{t+8}:{t+11}], v7, s[8:11], s40 offen')
    k('s_branch K2_end')
    k('K2_V:')
    vq.q = list(q0)
    gemm_core(k, 20, RT, CT, True, tr_addr, tr_off, issue_dma, issue_act, 16384, vq)
    k(f'''
s_lshl_b32 s37, s5, 3
s_lshl_b32 s38, s4, 1
s_add_u32 s37, s37, s38          ; seg0
s_mul_i32 s37, s37, {32*12288}
s_add_u32 s36, s37, {VF}
''')
    for ct in range(CT):
        k(f'''
s_lshl_b32 s38, s20, 3
s_add_u32 s38, s38, {ct}         ; ge
s_mul_i32 s39, s38, 5462
s_lshr_b32 s39, s39, 16
s_mul_i32 s40, s39, 12
s_sub_u32 s40, s38, s40
s_mul_i32 s39, s39, 12288
s_lshl_b32 s40, s40, 10
s_add_u32 s39, s39, s40
s_add_u32 s39, s39, s36
''')
        for sg in range(2):
            a0 = ((2*sg)*CT + ct)*4; a1 = ((2*sg+1)*CT + ct)*4
            t = 16 + sg*12
            acc_to_v(k, a0, t); acc_to_v(k, a1, t+4)
            k(f'v_cvt_pk_bf16_f32 v{t+8}, v{t}, v{t+1}')
            k(f'v_cvt_pk_bf16_f32 v{t+9}, v{t+2}, v{t+3}')
            k(f'v_cvt_pk_bf16_f32 v{t+10}, v{t+4}, v{t+5}')
            k(f'v_cvt_pk_bf16_f32 v{t+11}, v{t+6}, v{t+7}')
            k(f's_add_u32 s40, s39, {sg*32*12288}')
            k(f'buffer_store_dwordx4 v[{t+8}:{t+11}], v7, s[8:11], s40 offen')

if __name__ == '__main__':
    for x in range(1152): assert (x*29128)>>22 == x//144, x
    for x in range(144): assert (x*1366)>>16 == x//48
    for x in range(192): assert (x*10923)>>16 == x//6
    for x in range(384): assert (x*5462)>>16 == x//12
    print('ok')
```

```python
from common import *
from k_gemm import *
from k_pre import ln_core, ln_apply_store, xlane_sum16_32

def k4_attn():
    k = Kern()
    k('s_cmp_ge_u32 s2, 512')
    k('s_cbranch_scc1 K4_end')
    load_srds(k, [('ws', 8)], 24)
    common_ids(k)
    k(f'''
s_lshl_b32 s5, s2, 2
s_add_u32 s5, s5, s4
s_mul_i32 s6, s5, 12288
s_mul_i32 s7, s5, 3072
v_lshlrev_b32 v5, 4, v2          ; lane*16
v_and_b32 v6, 7, v4
v_lshlrev_b32 v7, 6, v3
v_lshl_add_u32 v7, v6, 3, v7
v_and_b32 v8, 1, v3
v_lshlrev_b32 v8, 7, v8
v_lshl_add_u32 v8, v4, 3, v8
''')
    Q = 16; K = 64; KM = 112;
    for rt in range(2):
        for p in range(6):
            k(f's_add_u32 s20, s6, {QF + rt*6144 + p*1024}')
            k(f'buffer_load_dwordx4 v[{Q+(rt*6+p)*4}:{Q+(rt*6+p)*4+3}], v5, s[8:11], s20 offen')
            k(f's_add_u32 s20, s6, {KF + rt*6144 + p*1024}')
            k(f'buffer_load_dwordx4 v[{K+(rt*6+p)*4}:{K+(rt*6+p)*4+3}], v5, s[8:11], s20 offen')
    k(f's_add_u32 s21, s7, {KMA}')
    for t in range(12):
        k(f'buffer_load_dwordx2 v[{KM+2*t}:{KM+2*t+1}], v7, s[8:11], s21 offen offset:{256*t}')
    V = 136; VM = 184
    for t in range(12):
        k(f's_add_u32 s20, s6, {VF + t*1024}')
        k(f'buffer_load_dwordx4 v[{V+4*t}:{V+4*t+3}], v5, s[8:11], s20 offen')
    k(f's_add_u32 s21, s7, {VMA}')
    for t in range(12):
        k(f'buffer_load_dwordx2 v[{VM+2*t}:{VM+2*t+1}], v8, s[8:11], s21 offen offset:{256*t}')
    k('s_waitcnt vmcnt(24)')
    S = 208
    for p in range(6):
        for qt in range(2):
            qf = f'v[{Q+(qt*6+p)*4}:{Q+(qt*6+p)*4+3}]'
            for kt in range(3):
                d = S + (qt*3+kt)*4
                if kt < 2: A = f'v[{K+(kt*6+p)*4}:{K+(kt*6+p)*4+3}]'
                else: A = f'v[{KM+4*p}:{KM+4*p+3}]'
                C = '0' if p == 0 else f'v[{d}:{d+3}]'
                k(f'v_mfma_f32_16x16x32_bf16 v[{d}:{d+3}], {A}, {qf}, {C}')
    T = 232
    NEG = '0xce6e6b28'
    k('v_lshlrev_b32 v9, 2, v3')
    PF = Q
    for qt in range(2):
        b = S + qt*12
        for j in range(0, 12, 2): round_bf16_pair(k, b+j, b+j+1, T)
        for j in range(12): k(f'v_mul_f32 v{b+j}, 0x3d93cd3a, v{b+j}')
        for j in range(0, 12, 2): round_bf16_pair(k, b+j, b+j+1, T)
        k(f'v_mov_b32 v{T+1}, {NEG}')
        k(f'v_add_u32 v{T+2}, {qt*16}, v4')
        for kt in range(2):
            for r in range(4):
                if kt*16 + 12 + r <= qt*16: continue
                k(f'v_add_u32 v{T+3}, {kt*16+r}, v9')
                k(f'v_cmp_le_u32 vcc, v{T+3}, v{T+2}')
                k(f'v_cndmask_b32 v{b+kt*4+r}, v{T+1}, v{b+kt*4+r}, vcc')
        k('v_cmp_gt_u32 vcc, 2, v3')
        k(f'v_mov_b32 v{T+4}, 0xff800000')
        for r in range(4):
            k(f'v_cndmask_b32 v{b+8+r}, v{T+4}, v{b+8+r}, vcc')
        k(f'v_max3_f32 v{T}, v{b}, v{b+1}, v{b+2}')
        for j in range(3, 11, 2): k(f'v_max3_f32 v{T}, v{T}, v{b+j}, v{b+j+1}')
        k(f'v_max_f32 v{T}, v{T}, v{b+11}')
        k(f'v_mov_b32 v{T+1}, v{T}')
        k(f'v_permlane32_swap_b32 v{T}, v{T+1}')
        k(f'v_max_f32 v{T}, v{T}, v{T+1}')
        k(f'v_mov_b32 v{T+1}, v{T}')
        k(f'v_permlane16_swap_b32 v{T}, v{T+1}')
        k(f'v_max_f32 v{T}, v{T}, v{T+1}')
        for j in range(12):
            k(f'v_sub_f32 v{b+j}, v{b+j}, v{T}')
            k(f'v_mul_f32 v{b+j}, 0x3fb8aa3b, v{b+j}')
            k(f'v_exp_f32 v{b+j}, v{b+j}')
        k(f'v_add_f32 v{T}, v{b}, v{b+1}')
        for j in range(2, 12): k(f'v_add_f32 v{T}, v{T}, v{b+j}')
        xlane_sum16_32(k, T, T+1)
        k(f'v_rcp_f32 v{T}, v{T}')
        for j in range(12): k(f'v_mul_f32 v{b+j}, v{b+j}, v{T}')
        for j in range(6): k(f'v_cvt_pk_bf16_f32 v{PF+qt*6+j}, v{b+2*j}, v{b+2*j+1}')
    k('s_waitcnt vmcnt(0)')
    k(f'''
s_lshr_b32 s20, s5, 5            ; seg
s_and_b32 s21, s5, 31            ; head
s_mul_i32 s20, s20, {2*192*1024}
s_mul_i32 s21, s21, 6144
s_add_u32 s20, s20, s21
s_add_u32 s20, s20, {OF}
''')
    O = K
    for p in range(6):
        for qt in range(2):
            o = O + ((p&1)*2 + qt)*12
            for h in range(2):
                t = 2*p + h
                k(f'v_mfma_f32_16x16x32_bf16 v[{o+4*h}:{o+4*h+3}], v[{V+4*t}:{V+4*t+3}], v[{PF+qt*6}:{PF+qt*6+3}], 0')
                k(f'v_mfma_f32_16x16x16_bf16 v[{o+4*h}:{o+4*h+3}], v[{VM+2*t}:{VM+2*t+1}], v[{PF+qt*6+4}:{PF+qt*6+5}], v[{o+4*h}:{o+4*h+3}]')
            for j in range(4): k(f'v_cvt_pk_bf16_f32 v{o+8+j}, v{o+2*j}, v{o+2*j+1}')
            k(f's_add_u32 s21, s20, {qt*192*1024 + p*1024}')
            k(f'buffer_store_dwordx4 v[{o+8}:{o+11}], v5, s[8:11], s21 offen')
    k('K4_end:')
    k('s_endpgm')
    return k.finalize(), 240, 240

def gemm_std_setup(k, ldw):
    k('''
v_lshrrev_b32 v5, 2, v4          ; i>>2
v_lshl_add_u32 v5, v3, 2, v5
v_and_b32 v6, 7, v5              ; r7
v_lshlrev_b32 v7, 8, v5          ; row*256
v_and_b32 v5, 3, v4
v_lshl_add_u32 v7, v5, 3, v7     ; + (i&3)*8
''')
    for ct in range(8):
        k(f'v_xor_b32 v5, {ct}, v6')
        k(f'v_lshl_add_u32 v{8+ct}, v5, 5, v7')
    k(f'''
v_lshrrev_b32 v5, 1, v4          ; p>>1
v_xor_b32 v5, v5, v3             ; ^ row (0..3)
v_lshlrev_b32 v5, 1, v5
v_and_b32 v6, 1, v4
v_or_b32 v5, v5, v6
v_lshlrev_b32 v5, 4, v5          ; chunk*16
v_mul_u32_u24 v6, {ldw}, v3
v_add_u32 v5, v5, v6
v_xor_b32 v6, 128, v5
v_lshlrev_b32 v7, 4, v2          ; lane*16
''')

def k_splitk(name, wname, actbase, act_nks, nk, nsplit):
    k = Kern(); vq = VmQ(k)
    RT, CT = 4, 8
    ldw = 1280
    k(f's_cmp_ge_u32 s2, {40*nsplit}')
    k(f's_cbranch_scc1 {name}_end')
    load_srds(k, [('ws', 8), (wname, 12)], 24)
    k('''
s_mul_i32 s5, s2, 1639
s_lshr_b32 s5, s5, 16
s_mul_i32 s6, s5, 40
s_sub_u32 s6, s2, s6             ; rem
s_mul_i32 s7, s6, 13108
s_lshr_b32 s7, s7, 16
s_mul_i32 s20, s7, 5
s_sub_u32 s20, s6, s20           ; ct
''')
    common_ids(k)
    gemm_std_setup(k, ldw)
    k(f'''
s_mul_i32 s30, s5, {nk*32*ldw}
s_mul_i32 s31, s4, {16*ldw}
s_add_u32 s30, s30, s31
s_lshl_b32 s31, s20, 8
s_add_u32 s30, s30, s31
s_lshl_b32 s31, s4, 12
s_lshl_b32 s32, s7, 4
s_lshl_b32 s33, s4, 2
s_add_u32 s32, s32, s33          ; rowtile0
s_mul_i32 s36, s32, {40*1024}
s_mul_i32 s32, s32, {act_nks*1024}
s_mul_i32 s33, s5, {nk*1024}
s_add_u32 s32, s32, s33
s_add_u32 s32, s32, {actbase}
s_mul_i32 s33, s5, {128*40*1024}
s_add_u32 s36, s36, s33
s_lshl_b32 s33, s20, 13
s_add_u32 s36, s36, s33
s_add_u32 s36, s36, {PART}
''')
    def issue_dma(st):
        for j in range(4):
            k(f's_add_u32 s34, s30, {(st*64 + 4*j)*ldw}')
            k(f's_add_u32 m0, s31, {(st&1)*16384 + j*1024}')
            k(f'buffer_load_dwordx4 v{5 + (j&1)}, s[12:15], s34 offen lds')
            vq.issue(f'd{st}')
    def issue_act(n, rb):
        for rt in range(RT):
            k(f's_add_u32 s35, s32, {rt*act_nks*1024 + n*1024}')
            k(f'buffer_load_dwordx4 v[{rb+4*rt}:{rb+4*rt+3}], v7, s[8:11], s35 offen')
            vq.issue(f'a{n}')
    tr_addr = [8+ct for ct in range(CT)]
    tr_off = lambda ct, kk, hf: (kk*32 + hf*16)*256
    gemm_core(k, nk, RT, CT, False, tr_addr, tr_off, issue_dma, issue_act, 16384, vq)
    for rt in range(RT):
        for ct in range(CT):
            a = (rt*CT + ct)*4
            k(f's_add_u32 s40, s36, {rt*40*1024 + ct*1024}')
            k(f'buffer_store_dwordx4 a[{a}:{a+3}], v7, s[8:11], s40 offen')
    k(f'{name}_end:')
    k('s_endpgm')
    return k.finalize(), 256, 128

def k5_wo(): return k_splitk('K5', 'Wo', OF, 192, 32, 6)
def k8_down(): return k_splitk('K8', 'wd', ACTF, 48, 8, 6)

def reduce_parts(k, nsplit, dst, tmp):
    for sp in range(nsplit):
        for t in range(10):
            r = (dst if sp == 0 else tmp) + 4*t
            k(f's_add_u32 s20, s5, {sp*128*40*1024 + t*1024}')
            k(f'buffer_load_dwordx4 v[{r}:{r+3}], v7, s[16:19], s20 offen')
        if sp > 0:
            k('s_waitcnt vmcnt(0)')
            for t in range(10):
                k(f'v_pk_add_f32 v[{dst+4*t}:{dst+4*t+1}], v[{dst+4*t}:{dst+4*t+1}], v[{tmp+4*t}:{tmp+4*t+1}]')
                k(f'v_pk_add_f32 v[{dst+4*t+2}:{dst+4*t+3}], v[{dst+4*t+2}:{dst+4*t+3}], v[{tmp+4*t+2}:{tmp+4*t+3}]')

def k6_res(final):
    nm = 'K9' if final else 'K6'
    k = Kern()
    k('s_cmp_ge_u32 s2, 128')
    k(f's_cbranch_scc1 {nm}_end')
    load_srds(k, [('x', 8), ('out', 12), ('ws', 16)], 24)
    k(f'''
v_lshrrev_b32 v1, 6, v0
v_and_b32 v2, 63, v0
v_and_b32 v3, 15, v2             ; row
v_lshrrev_b32 v4, 4, v2          ; qd
v_readfirstlane_b32 s4, v1       ; wave
v_lshlrev_b32 v7, 4, v2
s_mul_i32 s5, s2, {40*1024}
s_mul_i32 s6, s4, 10240
s_add_u32 s5, s5, s6
s_add_u32 s5, s5, {PART}
s_lshl_b32 s6, s2, 4
v_add_u32 v5, s6, v3
v_mul_u32_u24 v5, 1280, v5
v_lshl_add_u32 v5, v4, 3, v5
s_mul_i32 s6, s4, 320
v_add_u32 v5, s6, v5
v_lshlrev_b32 v6, 4, v4
s_mul_i32 s7, s4, 640
v_add_u32 v6, s7, v6
''')
    X = 30
    reduce_parts(k, 6, X, 80)
    for t in range(10):
        if final:
            k(f's_mov_b32 s20, {X1}')
            k(f'buffer_load_dwordx2 v[{10+2*t}:{11+2*t}], v5, s[16:19], s20 offen offset:{32*t}')
        else:
            k(f'buffer_load_dwordx2 v[{10+2*t}:{11+2*t}], v5, s[8:11], 0 offen offset:{32*t}')
    goff = MOD + (5 if final else 2)*2560
    k(f's_mov_b32 s21, {goff}')
    for t in range(10):
        k(f'buffer_load_dwordx4 v[{80+4*t}:{83+4*t}], v6, s[16:19], s21 offen offset:{64*t}')
    k('s_waitcnt vmcnt(0)')
    for j in range(0, 40, 2):
        a, b = X + j, X + j + 1
        round_bf16_pair(k, a, b, 71)
        k(f'v_mul_f32 v{a}, v{a}, v{80+j}')
        k(f'v_mul_f32 v{b}, v{b}, v{81+j}')
        round_bf16_pair(k, a, b, 71)
        r = 10 + j//2
        k(f'v_lshlrev_b32 v72, 16, v{r}')
        k(f'v_and_b32 v73, 0xffff0000, v{r}')
        k(f'v_add_f32 v{a}, v{a}, v72')
        k(f'v_add_f32 v{b}, v{b}, v73')
        k(f'v_cvt_pk_bf16_f32 v{r}, v{a}, v{b}')
        if not final:
            k(f'v_lshlrev_b32 v{a}, 16, v{r}')
            k(f'v_and_b32 v{b}, 0xffff0000, v{r}')
    if final:
        for t in range(10):
            k(f'buffer_store_dwordx2 v[{10+2*t}:{11+2*t}], v5, s[12:15], 0 offen offset:{32*t}')
    else:
        k(f's_mov_b32 s20, {X1}')
        for t in range(10):
            k(f'buffer_store_dwordx2 v[{10+2*t}:{11+2*t}], v5, s[16:19], s20 offen offset:{32*t}')
        k(f's_mov_b32 s21, {MOD + 4*2560}')
        k(f's_mov_b32 s22, {MOD + 3*2560}')
        for t in range(10):
            k(f'buffer_load_dwordx4 v[{80+4*t}:{83+4*t}], v6, s[16:19], s21 offen offset:{64*t}')
            k(f'buffer_load_dwordx4 v[{120+4*t}:{123+4*t}], v6, s[16:19], s22 offen offset:{64*t}')
        ln_core(k, X, 40, 4, nm)
        k(f's_mul_i32 s5, s2, 20480')
        k(f's_mul_i32 s6, s4, 5120')
        k(f's_add_u32 s5, s5, s6')
        k(f's_add_u32 s5, s5, {H2F}')
        k('s_waitcnt vmcnt(0)')
        ln_apply_store(k, X, 80, 120, 7, 's5')
    k(f'{nm}_end:')
    k('s_endpgm')
    return k.finalize(), 168, 168

def k7_ffn1():
    k = Kern(); vq = VmQ(k)
    RT, CT = 4, 8
    ldw = 3072
    k('s_cmp_ge_u32 s2, 192')
    k('s_cbranch_scc1 K7_end')
    load_srds(k, [('ws', 8), ('wg', 12), ('wu', 16)], 24)
    k('''
s_mul_i32 s5, s2, 2731
s_lshr_b32 s5, s5, 16
s_mul_i32 s6, s5, 24
s_sub_u32 s20, s2, s6            ; ft
''')
    common_ids(k)
    k('''
v_lshrrev_b32 v5, 2, v4
v_lshl_add_u32 v5, v3, 2, v5     ; row
v_bfe_u32 v6, v5, 1, 2           ; swz
v_lshlrev_b32 v7, 7, v5
v_and_b32 v5, 3, v4
v_lshl_add_u32 v7, v5, 3, v7
''')
    for ct in range(4):
        k(f'v_xor_b32 v5, {ct}, v6')
        k(f'v_lshl_add_u32 v{8+ct}, v5, 5, v7')
    k(f'''
v_lshrrev_b32 v12, 3, v2         ; row 0..7
v_and_b32 v13, 7, v2             ; p
v_lshrrev_b32 v5, 1, v13
v_bfe_u32 v6, v12, 1, 2
v_xor_b32 v5, v5, v6
v_lshlrev_b32 v5, 1, v5
v_and_b32 v6, 1, v13
v_or_b32 v5, v5, v6
v_lshlrev_b32 v5, 4, v5
v_mul_u32_u24 v6, {ldw}, v12
v_add_u32 v5, v5, v6
v_lshlrev_b32 v7, 4, v2
s_mul_i32 s30, s4, {16*ldw}
s_lshl_b32 s31, s20, 7
s_add_u32 s30, s30, s31
s_lshl_b32 s31, s4, 11
s_lshl_b32 s32, s5, 4
s_lshl_b32 s33, s4, 2
s_add_u32 s32, s32, s33          ; rowtile0
s_mul_i32 s36, s32, {48*1024}
s_mul_i32 s32, s32, 20480
s_add_u32 s32, s32, {H2F}
s_lshl_b32 s33, s20, 11
s_add_u32 s36, s36, s33
s_add_u32 s36, s36, {ACTF}
''')
    def issue_dma(st):
        for m in range(2):
            for j in range(2):
                k(f's_add_u32 s34, s30, {(st*64 + 8*j)*ldw}')
                k(f's_add_u32 m0, s31, {(st&1)*16384 + m*8192 + j*1024}')
                k(f'buffer_load_dwordx4 v5, s[{12+4*m}:{15+4*m}], s34 offen lds')
                vq.issue(f'd{st}')
    def issue_act(n, rb):
        for rt in range(RT):
            k(f's_add_u32 s35, s32, {rt*20480 + n*1024}')
            k(f'buffer_load_dwordx4 v[{rb+4*rt}:{rb+4*rt+3}], v7, s[8:11], s35 offen')
            vq.issue(f'a{n}')
    tr_addr = [8 + (ct & 3) for ct in range(CT)]
    tr_off = lambda ct, kk, hf: (ct>>2)*8192 + (kk*32 + hf*16)*128
    gemm_core(k, 20, RT, CT, False, tr_addr, tr_off, issue_dma, issue_act, 16384, vq)
    k('v_mov_b32 v50, 0x3d372713')
    k('v_mov_b32 v51, 0xc0135761')
    for rt in range(RT):
        for pr in range(2):
            G = 16; U = 24; T = 32
            for h in range(2):
                acc_to_v(k, (rt*CT + 2*pr + h)*4, G + 4*h)
                acc_to_v(k, (rt*CT + 4 + 2*pr + h)*4, U + 4*h)
            for j in range(0, 8, 2):
                round_bf16_pair(k, G+j, G+j+1, T); round_bf16_pair(k, U+j, U+j+1, T)
            for j in range(8):
                g = G + j; t = T + 1 + j
                k(f'v_mul_f32 v{t}, v{g}, v{g}')
                k(f'v_fma_f32 v{t}, v{t}, v50, 1.0')
                k(f'v_mul_f32 v{t}, v{t}, v{g}')
                k(f'v_mul_f32 v{t}, v51, v{t}')
                k(f'v_exp_f32 v{t}, v{t}')
                k(f'v_add_f32 v{t}, 1.0, v{t}')
                k(f'v_rcp_f32 v{t}, v{t}')
                k(f'v_mul_f32 v{g}, v{g}, v{t}')
            for j in range(0, 8, 2):
                round_bf16_pair(k, G+j, G+j+1, T)
            for j in range(8): k(f'v_mul_f32 v{G+j}, v{G+j}, v{U+j}')
            O = 44 + (pr&1)*0
            for j in range(4): k(f'v_cvt_pk_bf16_f32 v{O+j}, v{G+2*j}, v{G+2*j+1}')
            k(f's_add_u32 s40, s36, {rt*48*1024 + pr*1024}')
            k(f'buffer_store_dwordx4 v[{O}:{O+3}], v7, s[8:11], s40 offen')
    k('K7_end:')
    k('s_endpgm')
    body = k.finalize()
    return body, 256, 128

if __name__ == '__main__':
    for x in range(240): assert (x*1639)>>16 == x//40
    for x in range(40): assert (x*13108)>>16 == x//5
    for x in range(192): assert (x*2731)>>16 == x//24
    import struct, math
    f = lambda v: hex(struct.unpack('<I', struct.pack('<f', v))[0])
    print(f(0.044715), f(-2*math.sqrt(2/math.pi)*1.4426950408889634), f(-1e9))
```

```python
from common import *

def k0_mod():
    k = Kern()
    k('s_cmp_ge_u32 s2, 128')
    k('s_cbranch_scc1 K0_end')
    load_srds(k, [('c', 8), ('wmod', 12), ('ws', 16), ('mem0', 20)], 24)
    total = SENT_HI - SENT_LO
    per = 128*256*16
    n = (total + per - 1)//per
    k(f'''
v_mov_b32 v2, -1
v_mov_b32 v3, -1
v_mov_b32 v4, -1
v_mov_b32 v5, -1
s_lshl_b32 s3, s2, 12
v_lshlrev_b32 v1, 4, v0
v_add_u32 v1, s3, v1
v_add_u32 v1, {SENT_LO}, v1
''')
    for i in range(n):
        off = i*per
        k(f'v_add_u32 v6, {off}, v1')
        k(f'v_subrev_u32 v7, {SENT_LO}, v6')
        k(f'v_cmp_gt_u32 vcc, {total}, v7')
        if off < 163840:
            k(f'''
v_lshrrev_b32 v8, 13, v7
v_mul_u32_u24 v9, 52429, v8
v_lshrrev_b32 v9, 18, v9
v_mul_u32_u24 v9, 40960, v9
v_sub_u32 v9, v7, v9
s_mov_b64 s[30:31], vcc
v_cmp_le_u32 vcc, 10240, v9
s_mov_b64 s[26:27], vcc
v_cmp_le_u32 vcc, 163840, v7
s_or_b64 s[26:27], s[26:27], vcc
s_and_b64 vcc, s[30:31], s[26:27]
''')
        k(f'''
s_and_saveexec_b64 s[24:25], vcc
s_cbranch_execz K0_s{i}
buffer_store_dwordx4 v[2:5], v6, s[16:19], 0 offen
K0_s{i}:
s_mov_b64 exec, s[24:25]
''')
    k('''
s_cmp_lt_u32 s2, 120
s_cbranch_scc1 K0_mod
s_cmp_ge_u32 s2, 124
s_cbranch_scc1 K0_end
s_sub_u32 s3, s2, 120
s_mul_i32 s3, s3, 40960
''')
    for i in range(5):
        k(f'''
v_add_u32 v1, {256*i}, v0
v_and_b32 v2, 7, v1
v_lshrrev_b32 v3, 3, v1
v_mul_u32_u24 v4, 1280, v2
v_lshl_add_u32 v4, v3, 3, v4
buffer_load_dwordx2 v[6:7], v4, s[20:23], 0 offen
v_lshrrev_b32 v8, 3, v3
v_and_b32 v9, 3, v3
v_bfe_u32 v10, v3, 2, 1          ; half
v_lshlrev_b32 v8, 9, v8
v_lshl_add_u32 v8, v9, 7, v8
v_lshl_add_u32 v8, v2, 4, v8
v_lshl_add_u32 v8, v10, 3, v8
v_add_u32 v8, s3, v8
v_add_u32 v8, {MEMB}, v8
s_waitcnt vmcnt(0)
buffer_store_dwordx2 v[6:7], v8, s[16:19], 0 offen
''')
    k('s_branch K0_end')
    k('K0_mod:')
    k('''
v_lshrrev_b32 v1, 2, v0          ; kg
v_and_b32 v2, 3, v0              ; cq
v_mul_u32_u24 v3, 7680, v1
v_lshl_add_u32 v3, v2, 4, v3
s_lshl_b32 s3, s2, 6
v_add_u32 v3, s3, v3             ; w offset
v_lshlrev_b32 v4, 1, v1          ; c offset
''')
    for j in range(10):
        k(f'buffer_load_ushort v{10+j}, v4, s[8:11], 0 offen offset:{128*j}')
    for j in range(10):
        k(f's_mov_b32 s4, {64*7680*j}')
        k(f'buffer_load_dwordx4 v[{20+4*j}:{23+4*j}], v3, s[12:15], s4 offen')
    k('s_waitcnt vmcnt(10)')
    for j in range(10):
        r = 10 + j
        k(f'''
v_lshlrev_b32 v{r}, 16, v{r}
v_mul_f32 v5, 0xbfb8aa3b, v{r}
v_exp_f32 v5, v5
v_add_f32 v5, 1.0, v5
v_rcp_f32 v5, v5
v_mul_f32 v{r}, v{r}, v5
''')
        round_bf16(k, r)
    for i in range(8): k(f'v_mov_b32 v{60+i}, 0')
    for j in range(10):
        k(f's_waitcnt vmcnt({9-j})')
        for i in range(4):
            w = 20 + 4*j + i
            k(f'v_lshlrev_b32 v5, 16, v{w}')
            k(f'v_and_b32 v6, 0xffff0000, v{w}')
            k(f'v_fmac_f32 v{60+2*i}, v{10+j}, v5')
            k(f'v_fmac_f32 v{61+2*i}, v{10+j}, v6')
    k('''
v_lshlrev_b32 v5, 7, v1
v_lshl_add_u32 v5, v2, 5, v5
ds_write_b128 v5, v[60:63]
ds_write_b128 v5, v[64:67] offset:16
s_waitcnt lgkmcnt(0)
s_barrier
v_and_b32 v6, 31, v0             ; col
v_lshrrev_b32 v7, 5, v0
v_lshlrev_b32 v8, 10, v7
v_lshl_add_u32 v8, v6, 2, v8
''')
    for i in range(8): k(f'ds_read_b32 v{10+i}, v8 offset:{128*i}')
    k('s_waitcnt lgkmcnt(0)')
    for i in range(1, 8): k(f'v_add_f32 v10, v10, v{10+i}')
    k('''
v_lshlrev_b32 v9, 2, v0
ds_write_b32 v9, v10 offset:8192
s_waitcnt lgkmcnt(0)
s_barrier
v_cmp_gt_u32 vcc, 32, v0
s_and_saveexec_b64 s[24:25], vcc
s_cbranch_execz K0_end
''')
    for i in range(8): k(f'ds_read_b32 v{10+i}, v9 offset:{8192+128*i}')
    k('s_waitcnt lgkmcnt(0)')
    for i in range(1, 8): k(f'v_add_f32 v10, v10, v{10+i}')
    round_bf16(k, 10)
    k('''
s_mul_i32 s4, s2, 52429
s_lshr_b32 s4, s4, 20
s_cmp_eq_u32 s4, 1
s_cselect_b32 s5, 1, 0
s_cmp_eq_u32 s4, 4
s_cselect_b32 s5, 1, s5
s_cmp_eq_u32 s5, 0
s_cbranch_scc1 K0_noadd
v_add_f32 v10, 1.0, v10
''')
    round_bf16(k, 10)
    k(f'''
K0_noadd:
s_lshl_b32 s4, s2, 7
v_add_u32 v9, s4, v9
buffer_store_dword v10, v9, s[16:19], 0 offen offset:{MOD}
K0_end:
s_endpgm
''')
    return k.finalize(), 72, 72


def ln_rows(k, name, src_kind, mod_scale, mod_shift, dst):
    pass

def xlane_sum16_32(k, r, t):
    k(f'v_mov_b32 v{t}, v{r}')
    k(f'v_permlane32_swap_b32 v{r}, v{t}')
    k(f'v_add_f32 v{r}, v{r}, v{t}')
    k(f'v_mov_b32 v{t}, v{r}')
    k(f'v_permlane16_swap_b32 v{r}, v{t}')
    k(f'v_add_f32 v{r}, v{r}, v{t}')

def k1_ln1():
    k = Kern()
    k('s_cmp_ge_u32 s2, 128')
    k('s_cbranch_scc1 K1_end')
    load_srds(k, [('x', 8), ('ws', 16)], 24)
    k('''
v_lshrrev_b32 v1, 6, v0
v_and_b32 v2, 63, v0
v_and_b32 v3, 15, v2             ; row
v_lshrrev_b32 v4, 4, v2          ; qd
v_readfirstlane_b32 s4, v1       ; wave
s_lshl_b32 s5, s2, 4
v_add_u32 v5, s5, v3
v_mul_u32_u24 v5, 1280, v5
v_lshl_add_u32 v5, v4, 3, v5
s_mul_i32 s6, s4, 320
v_add_u32 v5, s6, v5
''')
    for i in range(5):
        for h in range(2):
            k(f'buffer_load_dwordx2 v[{10+4*i+2*h}:{11+4*i+2*h}], v5, s[8:11], 0 offen offset:{64*i+32*h}')
    k('''
v_lshlrev_b32 v6, 4, v4
s_mul_i32 s7, s4, 640
v_add_u32 v6, s7, v6
''')
    for i in range(5):
        for h in range(2):
            k(f'buffer_load_dwordx4 v[{80+8*i+4*h}:{83+8*i+4*h}], v6, s[16:19], 0 offen offset:{MOD+2560+128*i+64*h}')
            k(f'buffer_load_dwordx4 v[{120+8*i+4*h}:{123+8*i+4*h}], v6, s[16:19], 0 offen offset:{MOD+128*i+64*h}')
    k('s_waitcnt vmcnt(20)')
    for j in range(20):
        k(f'v_lshlrev_b32 v{30+2*j}, 16, v{10+j}')
        k(f'v_and_b32 v{31+2*j}, 0xffff0000, v{10+j}')
    ln_core(k, 30, 40, 4, 'K1')
    k(f's_mul_i32 s5, s2, 20480')
    k(f's_mul_i32 s6, s4, 5120')
    k(f's_add_u32 s5, s5, s6')
    k(f's_add_u32 s5, s5, {H1F}')
    k('v_lshlrev_b32 v7, 4, v2')
    k('s_waitcnt vmcnt(0)')
    ln_apply_store(k, 30, 80, 120, 7, 's5')
    k('K1_end:')
    k('s_endpgm')
    return k.finalize(), 168, 168

def ln_core(k, x0, n, wave_s, pfx):
    k(f'v_add_f32 v70, v{x0}, v{x0+1}')
    for j in range(2, n): k(f'v_add_f32 v70, v70, v{x0+j}')
    xlane_sum16_32(k, 70, 71)
    k(f'''
s_lshl_b32 s30, s{wave_s}, 6
v_lshlrev_b32 v72, 2, v3
v_add_u32 v73, s30, v72
ds_write_b32 v73, v70
s_waitcnt lgkmcnt(0)
s_barrier
ds_read_b32 v74, v72
ds_read_b32 v75, v72 offset:64
ds_read_b32 v76, v72 offset:128
ds_read_b32 v77, v72 offset:192
s_waitcnt lgkmcnt(0)
v_add_f32 v74, v74, v75
v_add_f32 v76, v76, v77
v_add_f32 v74, v74, v76
v_mul_f32 v74, 0x3acccccd, v74
''')
    k(f'v_sub_f32 v71, v{x0}, v74')
    k(f'v_mul_f32 v70, v71, v71')
    for j in range(1, n):
        k(f'v_sub_f32 v71, v{x0+j}, v74')
        k(f'v_fmac_f32 v70, v71, v71')
    xlane_sum16_32(k, 70, 71)
    k(f'''
ds_write_b32 v73, v70 offset:256
s_waitcnt lgkmcnt(0)
s_barrier
ds_read_b32 v75, v72 offset:256
ds_read_b32 v76, v72 offset:320
ds_read_b32 v77, v72 offset:384
ds_read_b32 v78, v72 offset:448
s_waitcnt lgkmcnt(0)
v_add_f32 v75, v75, v76
v_add_f32 v77, v77, v78
v_add_f32 v75, v75, v77
v_mul_f32 v75, 0x3acccccd, v75     ; var
''')
    round_bf16(k, 74)
    round_bf16(k, 75)
    k('v_add_f32 v75, 0x3727c5ac, v75')
    round_bf16(k, 75)
    k('v_sqrt_f32 v75, v75')
    round_bf16(k, 75)
    k('v_rcp_f32 v76, v75')
    for j in range(0, n, 2):
        a, b = x0 + j, x0 + j + 1
        k(f'v_sub_f32 v{a}, v{a}, v74')
        k(f'v_sub_f32 v{b}, v{b}, v74')
        round_bf16_pair(k, a, b, 71)
        for r in (a, b):
            k(f'v_mul_f32 v77, v{r}, v76')
            k(f'v_fma_f32 v78, -v77, v75, v{r}')
            k(f'v_fma_f32 v{r}, v78, v76, v77')
        round_bf16_pair(k, a, b, 71)

def ln_apply_store(k, x0, sc0, sh0, voff, soff):
    for i in range(5):
        for j in range(0, 8, 2):
            a, b = x0 + 8*i + j, x0 + 8*i + j + 1
            k(f'v_mul_f32 v{a}, v{a}, v{sc0+8*i+j}')
            k(f'v_mul_f32 v{b}, v{b}, v{sc0+8*i+j+1}')
            round_bf16_pair(k, a, b, 71)
            k(f'v_add_f32 v{a}, v{a}, v{sh0+8*i+j}')
            k(f'v_add_f32 v{b}, v{b}, v{sh0+8*i+j+1}')
            k(f'v_cvt_pk_bf16_f32 v{10+4*i+j//2}, v{a}, v{b}')
        if i == 4:
            k(f's_add_u32 {soff}, {soff}, 4096')
        k(f'buffer_store_dwordx4 v[{10+4*i}:{13+4*i}], v{voff}, s[16:19], {soff} offen offset:{(1024*i)%4096}')
```

```python
from common import *

SPIN_LIMIT = 4000000
L_RED = 0
L_PL  = 18432
L_VML = 19456
L_OL  = 22528

N8MASK = ('0x00ff00ff', '0x00ff00ff')

def maxtree(k, regs, dst):
    regs = list(regs)
    k(f'v_max3_u32 v{dst}, v{regs[0]}, v{regs[1]}, v{regs[2]}')
    i = 3
    while i < len(regs):
        if i + 1 < len(regs):
            k(f'v_max3_u32 v{dst}, v{dst}, v{regs[i]}, v{regs[i+1]}'); i += 2
        else:
            k(f'v_max_u32 v{dst}, v{dst}, v{regs[i]}'); i += 1

def k3_rec(NSTEP=64, prof=False, fake=False):
    k = Kern()
    k(f'''
s_getreg_b32 s3, hwreg(HW_REG_XCC_ID)
s_and_b32 s3, s3, 7
s_cmp_ge_u32 s3, 4
s_cbranch_scc1 K3_end
s_cmp_ge_u32 s2, 256
s_cbranch_scc1 K3_end
''')
    load_srds(k, [('ws', 8), ('dbg', 12)], 24)
    k('''
v_lshrrev_b32 v1, 6, v0
v_and_b32 v2, 63, v0
v_readfirstlane_b32 s4, v1
v_mov_b32 v3, 1
s_lshl_b32 s21, s3, 2
v_mov_b32 v4, s21
v_cmp_eq_u32 vcc, 0, v0
s_and_saveexec_b64 s[22:23], vcc
s_cbranch_execz K3_noat
buffer_atomic_add v3, v4, s[12:15], 0 offen sc0 sc1
s_waitcnt vmcnt(0)
v_mov_b32 v5, 0
ds_write_b32 v5, v3
K3_noat:
s_mov_b64 exec, s[22:23]
s_waitcnt lgkmcnt(0)
s_barrier
v_mov_b32 v5, 0
ds_read_b32 v3, v5
s_waitcnt lgkmcnt(0)
v_readfirstlane_b32 s5, v3       ; slot
s_barrier
s_cmp_ge_u32 s5, 32
s_cbranch_scc1 K3_end
s_lshr_b32 s6, s5, 2             ; hl
s_and_b32 s7, s5, 3              ; g
s_lshl_b32 s20, s3, 3
s_add_u32 s20, s20, s6           ; head
v_lshrrev_b32 v3, 4, v2          ; qd
v_and_b32 v4, 15, v2             ; n
v_and_b32 v5, 7, v2              ; n&7
''')
    k('''
s_mul_i32 s21, s4, 18432
v_lshrrev_b32 v6, 2, v4
v_lshl_add_u32 v6, v3, 2, v6
v_mul_u32_u24 v6, 96, v6
v_and_b32 v7, 3, v4
v_lshl_add_u32 v6, v7, 3, v6
v_add_u32 v6, s21, v6
''')
    def stage(nrows, ldw, sbase):
        nit = nrows * 6 // 64
        assert nrows * 6 % 64 == 0
        for it in range(nit):
            k(f'''
v_add_u32 v7, {64*it}, v2
v_mul_u32_u24 v8, 10923, v7
v_lshrrev_b32 v8, 16, v8         ; row
v_mul_u32_u24 v9, 6, v8
v_sub_u32 v9, v7, v9             ; ch
v_mul_u32_u24 v8, {ldw}, v8
v_lshl_add_u32 v8, v9, 4, v8
s_add_u32 m0, s21, {1024*it}
buffer_load_dwordx4 v8, s[16:19], {sbase} offen lds
''')
        k('s_waitcnt vmcnt(0)')
    k(f'''
s_mul_i32 s24, s4, {160*12288}
s_mul_i32 s25, s20, 384
s_add_u32 s24, s24, s25
s_mul_i32 s25, s7, 96
s_add_u32 s24, s24, s25
s_and_b32 s26, s7, 1             ; g odd
''')
    for m, nm in enumerate(('Wq', 'Wk', 'Wv')):
        k(f's_load_dwordx2 s[16:17], s[0:1], {KA[nm]}')
        k('s_waitcnt lgkmcnt(0)')
        k(f's_and_b32 s17, s17, 0xffff')
        k(f's_mov_b32 s18, {SZ[nm]}')
        k(f's_mov_b32 s19, 0x00020000')
        stage(160, 12288, 's24')
        if m < 2:
            for sl in range(3):
                k(f's_mov_b32 s27, {sl*32}')
                k(f's_mov_b32 s28, {((sl+1)%3)*32}')
                k('s_cmp_eq_u32 s26, 1')
                k('s_cselect_b32 s27, s28, s27')
                k(f'v_add_u32 v{10+sl}, s27, v6')
        else:
            for sl in range(3): k(f'v_add_u32 v{10+sl}, {sl*32}, v6')
        for sl in range(3):
            t = 3*m + sl
            for i in range(5):
                for hf in range(2):
                    a = (t*5 + i)*4 + 2*hf
                    k(f'ds_read_b64_tr_b16 a[{a}:{a+1}], v{10+sl} offset:{(i*32 + hf*16)*96}')
                k('s_waitcnt lgkmcnt(0)')
    k(f'''
s_load_dwordx2 s[16:17], s[0:1], {KA["Wo"]}
s_mul_i32 s27, s4, 3
s_lshl_b32 s28, s4, 1
s_add_u32 s28, s28, 2
s_cmp_lt_u32 s4, 2
s_cselect_b32 s29, s27, s28      ; t0
s_mul_i32 s24, s20, {192*1280}
s_mul_i32 s25, s7, 320
s_add_u32 s24, s24, s25
s_lshl_b32 s25, s29, 5
s_add_u32 s24, s24, s25
s_waitcnt lgkmcnt(0)
s_and_b32 s17, s17, 0xffff
s_mov_b32 s18, {SZ["Wo"]}
s_mov_b32 s19, 0x00020000
''')
    stage(192, 1280, 's24')
    for t in range(3):
        for ks in range(6):
            for hf in range(2):
                a = 180 + (t*6 + ks)*4 + 2*hf
                k(f'ds_read_b64_tr_b16 a[{a}:{a+1}], v6 offset:{t*32 + (ks*32 + hf*16)*96}')
            k('s_waitcnt lgkmcnt(0)')
    k('s_barrier')
    k(f'''
s_mul_i32 s24, s3, 40960
s_mul_i32 s25, s4, 2560
s_add_u32 s24, s24, s25
s_add_u32 s24, s24, {MEMB}
v_lshlrev_b32 v6, 7, v3
v_lshl_add_u32 v6, v5, 4, v6     ; qd*128 + (n&7)*16
v_add_u32 v10, s24, v6
v_lshlrev_b32 v13, 3, v3
v_add_u32 v13, v13, v5
v_lshlrev_b32 v13, 4, v13
s_mul_i32 s24, s4, 4608
v_add_u32 v11, s24, v13
v_and_b32 v14, 31, v2
v_lshlrev_b32 v14, 4, v14
v_add_u32 v12, s24, v14
s_lshl_b32 s24, s20, 2
s_add_u32 s24, s24, s7
s_mul_i32 s24, s24, 1536
s_add_u32 s24, s24, {SCB}
v_lshlrev_b32 v15, 4, v5
v_lshl_add_u32 v15, v3, 7, v15
v_add_u32 v15, s24, v15
v_lshlrev_b32 v16, 6, v3
v_lshl_add_u32 v16, v5, 3, v16
s_mul_i32 s24, s20, 3072
s_add_u32 s25, s24, {KMA}
v_add_u32 v16, s25, v16
v_and_b32 v17, 1, v3
v_lshlrev_b32 v17, 7, v17
v_lshl_add_u32 v17, v4, 3, v17
s_mul_i32 s25, s7, 768
s_add_u32 s25, s25, s24          ; head*3072 + g*768
s_add_u32 s26, s25, {VB}
v_add_u32 v18, s26, v17
s_add_u32 s26, s25, {VMA}
v_add_u32 v19, s26, v17
s_mul_i32 s26, s20, 6144
s_add_u32 s26, s26, {SCB}
v_lshrrev_b32 v6, 3, v2
v_lshlrev_b32 v20, 4, v6
v_lshl_add_u32 v20, v5, 7, v20
v_add_u32 v20, s26, v20
v_lshrrev_b32 v7, 2, v5
v_lshlrev_b32 v45, 7, v7
v_lshl_add_u32 v45, v6, 4, v45
v_and_b32 v7, 3, v5
v_lshl_add_u32 v45, v7, 2, v45
s_add_u32 s26, s26, 1024
v_add_u32 v45, s26, v45
''')
    for c in range(5):
        k(f'''
v_lshlrev_b32 v7, {2 if c < 4 else 0}, v5
v_add_u32 v7, {c if c < 4 else 32}, v7            ; kk
v_bfe_u32 v8, v7, 2, 2           ; (kk>>2)&3
v_lshlrev_b32 v8, 4, v8
v_lshrrev_b32 v9, 4, v7          ; kk>>4
v_lshl_add_u32 v8, v9, 3, v8
v_and_b32 v9, 3, v7
v_lshl_add_u32 v8, v9, 1, v8
v_lshlrev_b32 v9, 1, v7
v_cmp_gt_u32 vcc, 32, v7
v_cndmask_b32 v8, v9, v8, vcc
v_lshl_add_u32 v8, v6, 7, v8
v_add_u32 v{21+c}, {L_PL}, v8
''')
    k(f'''
v_lshlrev_b32 v27, 4, v2
s_add_u32 s26, s24, {VB}
v_add_u32 v26, s26, v27
v_lshlrev_b32 v28, 7, v5
v_lshl_add_u32 v29, v3, 3, v28
v_add_u32 v29, {L_PL+64}, v29
v_lshl_add_u32 v28, v3, 4, v28
v_add_u32 v28, {L_PL}, v28
s_mul_i32 s26, s4, 768
s_add_u32 s26, s26, {L_VML}
v_add_u32 v30, s26, v17
v_lshlrev_b32 v31, 7, v3
v_lshl_add_u32 v31, v5, 4, v31
v_add_u32 v31, {L_OL}, v31
''')
    for t in range(3):
        k(f'''
s_mul_i32 s26, s4, 3
s_add_u32 s26, s26, {t}
s_lshr_b32 s27, s26, 1
s_lshl_b32 s27, s27, 9
s_and_b32 s26, s26, 1
s_lshl_b32 s26, s26, 3
s_add_u32 s26, s26, s27
v_add_u32 v{32+t}, s26, v31
''')
    for t in range(3):
        k(f'''
s_add_u32 s27, s29, {t}
s_lshl_b32 s27, s27, 2
s_mul_i32 s26, s7, 40
s_add_u32 s27, s27, s26
v_add_u32 v9, s27, v3            ; cg
v_mul_u32_u24 v6, 52429, v9
v_lshrrev_b32 v6, 18, v6         ; j'
v_mul_u32_u24 v7, 5, v6
v_sub_u32 v7, v9, v7             ; c
s_lshl_b32 s27, s3, 5
v_add_u32 v6, s27, v6
v_lshlrev_b32 v6, 3, v6
v_add_u32 v6, s6, v6
v_mul_u32_u24 v6, 640, v6
v_lshl_add_u32 v7, v7, 3, v5
v_lshl_add_u32 v6, v7, 4, v6
v_add_u32 v{35+t}, {PB}, v6
''')
    k(f'''
v_min_u32 v7, 39, v2
v_lshlrev_b32 v6, 4, v7
s_lshl_b32 s27, s3, 5
s_add_u32 s27, s27, s5
s_mul_i32 s27, s27, 5120
s_add_u32 s27, s27, {PB}
v_add_u32 v38, s27, v6
s_mul_i32 s27, s5, 2560
s_add_u32 s27, s27, {XB}
v_add_u32 v39, s27, v6
s_mul_i32 s28, s3, 640
v_add_u32 v40, s28, v39
; v41: MEMB store: q = l/5, c = l%5 ; cgm = 5j + c
v_and_b32 v8, 7, v7              ; q
v_lshrrev_b32 v9, 3, v7          ; c
s_mul_i32 s27, s5, 5
v_add_u32 v9, s27, v9            ; cgm
v_lshrrev_b32 v6, 3, v9
v_lshlrev_b32 v6, 9, v6
v_and_b32 v7, 3, v9
v_lshl_add_u32 v6, v7, 7, v6
v_lshl_add_u32 v6, v8, 4, v6
v_bfe_u32 v7, v9, 2, 1
v_lshl_add_u32 v6, v7, 3, v6
s_mul_i32 s27, s3, 40960
s_add_u32 s27, s27, {MEMB}
v_add_u32 v41, s27, v6
s_mul_i32 s26, s7, 3
s_add_u32 s26, s26, 1
s_lshr_b32 s26, s26, 1           ; pf
s_and_b32 s27, s7, 1
s_lshl_b32 s28, s27, 1
s_add_u32 s30, s26, 1
s_sub_u32 s30, s30, s28          ; ph
s_lshl_b32 s26, s26, 10
s_lshl_b32 s30, s30, 10
s_lshl_b32 s27, s27, 3
s_add_u32 s30, s30, s27
s_mul_i32 s27, s20, 12288
s_add_u32 s27, s27, {KF}
s_add_u32 s26, s26, s27
s_add_u32 s30, s30, s27
v_add_u32 v42, s26, v27
v_add_u32 v43, s30, v27
s_mul_i32 s26, s20, 12288
s_mul_i32 s27, s4, 3072
s_add_u32 s26, s26, s27
s_add_u32 s26, s26, {VF}
v_add_u32 v44, s26, v27
s_mul_i32 s26, s7, 3
s_and_b32 s27, s7, 1
''')
    for sl in range(3):
        k(f'''
s_add_u32 s28, s26, {sl}
s_add_u32 s30, s26, {(sl+1)%3}
s_cmp_eq_u32 s27, 1
s_cselect_b32 s28, s30, s28
s_lshl_b32 s{31+sl}, s28, 8
''')
    k(f'''
v_mov_b32 v48, -1
v_mov_b32 v49, -1
v_mov_b32 v50, -1
v_mov_b32 v51, -1
v_mov_b32 v52, 0
v_mov_b32 v53, 0
v_mov_b32 v54, 0
v_mov_b32 v55, 0
v_add_u32 v6, {L_PL}, v27
ds_write_b128 v6, v[52:55]
s_waitcnt lgkmcnt(0)
s_barrier
s_mov_b32 s40, 0       ; step
s_mov_b32 s41, 0       ; spins
s_mov_b32 s47, 0
''')
    KX = 60
    VX = 72
    MF = 84
    AC = 104
    T0 = 140
    def load_kx(soff):
        for rt in range(2):
            k(f's_add_u32 s48, {soff}, {rt*6144}')
            k(f'buffer_load_dwordx4 v[{KX+6*rt}:{KX+6*rt+3}], v42, s[8:11], s48 offen')
            k(f'buffer_load_dwordx2 v[{KX+6*rt+4}:{KX+6*rt+5}], v43, s[8:11], s48 offen')
    def load_vx(soff):
        for t in range(3):
            k(f'buffer_load_dwordx4 v[{VX+4*t}:{VX+4*t+3}], v44, s[8:11], {soff} offen offset:{1024*t}')
    load_vx('s47')
    k('s_cmp_eq_u32 s4, 0'); k('s_cbranch_scc0 K3_i1')
    load_kx('s47')
    k('K3_i1:')
    def ts(i):
        if prof:
            k(f's_memtime s[{60+2*i}:{61+2*i}]')
    k('''
K3_step:
s_and_b32 s42, s40, 3
s_add_u32 s43, s40, 2
s_and_b32 s43, s43, 3
s_add_u32 s44, s40, 1
s_and_b32 s44, s44, 3
s_add_u32 s45, s40, 3
s_and_b32 s45, s45, 3
s_mul_i32 s46, s42, 10240
K3_pc:
''')
    for i in range(5):
        k(f'buffer_load_dwordx4 v[{MF+4*i}:{MF+4*i+3}], v10, s[8:11], s46 offen offset:{512*i} sc1')
    k('s_waitcnt vmcnt(0)')
    maxtree(k, range(MF, MF+20), T0)
    k(f'''
v_cmp_eq_u32 vcc, -1, v{T0}
s_cbranch_vccz K3_pc_ok
s_add_u32 s41, s41, 1
s_cmp_lt_u32 s41, {SPIN_LIMIT}
s_cbranch_scc1 K3_pc
K3_pc_ok:
''')
    ts(0)
    for grp in (range(6), range(6, 9)):
        for i in range(5):
            for t in grp:
                a = (t*5 + i)*4; d = AC + 4*t; m = MF + 4*i
                C = '0' if i == 0 else f'v[{d}:{d+3}]'
                if t < 6: k(f'v_mfma_f32_16x16x32_bf16 v[{d}:{d+3}], a[{a}:{a+3}], v[{m}:{m+3}], {C}')
                else:     k(f'v_mfma_f32_16x16x32_bf16 v[{d}:{d+3}], v[{m}:{m+3}], a[{a}:{a+3}], {C}')
    k(f's_mov_b32 exec_lo, {N8MASK[0]}'); k(f's_mov_b32 exec_hi, {N8MASK[1]}')
    for t in range(6): k(f'ds_write_b128 v11, v[{AC+4*t}:{AC+4*t+3}] offset:{512*t}')
    k('s_mov_b32 exec_lo, -1'); k('s_mov_b32 exec_hi, 0')
    for t in range(6, 9): k(f'ds_write_b128 v12, v[{AC+4*t}:{AC+4*t+3}] offset:{512*t}')
    k('s_mov_b64 exec, -1')
    k('s_waitcnt lgkmcnt(0)')
    k('s_barrier')
    ts(1)
    k(f's_mul_i32 s47, s40, {0 if fake else 32*3072}')
    k('s_cmp_eq_u32 s4, 0'); k('s_cbranch_scc1 K3_w0')
    k('s_cmp_eq_u32 s4, 1'); k('s_cbranch_scc1 K3_w1')
    k('s_cmp_eq_u32 s4, 2'); k('s_cbranch_scc1 K3_w2')
    k('s_branch K3_b2')
    k('K3_w0:')
    for t in range(6):
        for w in range(4):
            r = T0 + (t*4 + w)*4
            k(f'ds_read_b128 v[{r}:{r+3}], v13 offset:{w*4608 + t*512}')
    QB = T0 + 96
    order = [3, 4, 5, 0, 1, 2]
    for t in range(6):
        k(f's_waitcnt lgkmcnt({min(15, (5-t)*4)})')
        r = T0 + t*16
        k(f'v_pk_add_f32 v[{r}:{r+1}], v[{r}:{r+1}], v[{r+4}:{r+5}]')
        k(f'v_pk_add_f32 v[{r+2}:{r+3}], v[{r+2}:{r+3}], v[{r+6}:{r+7}]')
        k(f'v_pk_add_f32 v[{r}:{r+1}], v[{r}:{r+1}], v[{r+8}:{r+9}]')
        k(f'v_pk_add_f32 v[{r+2}:{r+3}], v[{r+2}:{r+3}], v[{r+10}:{r+11}]')
        k(f'v_pk_add_f32 v[{r}:{r+1}], v[{r}:{r+1}], v[{r+12}:{r+13}]')
        k(f'v_pk_add_f32 v[{r+2}:{r+3}], v[{r+2}:{r+3}], v[{r+14}:{r+15}]')
        k(f'v_cvt_pk_bf16_f32 v{QB+2*t}, v{r}, v{r+1}')
        k(f'v_cvt_pk_bf16_f32 v{QB+2*t+1}, v{r+2}, v{r+3}')
    ts(7)
    SA = AC
    k('s_waitcnt vmcnt(0)')
    q32 = f'v[{QB}:{QB+3}]'; q16 = f'v[{QB+4}:{QB+5}]'
    k32 = f'v[{QB+6}:{QB+9}]'; k16 = f'v[{QB+10}:{QB+11}]'
    k(f'v_mfma_f32_16x16x32_bf16 v[{SA}:{SA+3}], v[{KX}:{KX+3}], {q32}, 0')
    k(f'v_mfma_f32_16x16x32_bf16 v[{SA+4}:{SA+7}], v[{KX+6}:{KX+9}], {q32}, 0')
    k(f'v_mfma_f32_16x16x32_bf16 v[{SA+8}:{SA+11}], {k32}, {q32}, 0')
    k(f'v_mfma_f32_16x16x16_bf16 v[{SA}:{SA+3}], v[{KX+4}:{KX+5}], {q16}, v[{SA}:{SA+3}]')
    k(f'v_mfma_f32_16x16x16_bf16 v[{SA+4}:{SA+7}], v[{KX+10}:{KX+11}], {q16}, v[{SA+4}:{SA+7}]')
    k(f'v_mfma_f32_16x16x16_bf16 v[{SA+8}:{SA+11}], {k16}, {q16}, v[{SA+8}:{SA+11}]')
    k(f's_mul_i32 s46, s42, {32*4*1536}')
    k(f's_mul_i32 s49, s43, {32*4*1536}')
    k(f's_cmp_eq_u32 s40, {NSTEP-1}')
    k('s_cbranch_scc1 K3_w0_last')
    k(f's_mov_b32 exec_lo, {N8MASK[0]}'); k(f's_mov_b32 exec_hi, {N8MASK[1]}')
    for t in range(3): k(f'buffer_store_dwordx4 v[{SA+4*t}:{SA+4*t+3}], v15, s[8:11], s46 offen offset:{512*t}')
    for t in range(3): k(f'buffer_store_dwordx4 v[48:51], v15, s[8:11], s49 offen offset:{512*t}')
    k('s_mov_b64 exec, -1')
    ts(8)
    k('s_add_u32 s50, s40, 1')
    k(f's_mul_i32 s50, s50, {0 if fake else 32*12288}')
    load_kx('s50')
    k('K3_w0_last:')
    k(f's_mov_b32 exec_lo, {N8MASK[0]}'); k(f's_mov_b32 exec_hi, {N8MASK[1]}')
    for sl in range(3):
        k(f's_add_u32 s48, s47, s{31+sl}')
        k(f'buffer_store_dwordx2 v[{QB+6+2*sl}:{QB+7+2*sl}], v16, s[8:11], s48 offen')
    k('s_mov_b64 exec, -1')
    k('s_branch K3_b2')
    k('K3_w2:')
    for t in range(3):
        for w in range(4):
            r = T0 + (t*4 + w)*4
            k(f'ds_read_b128 v[{r}:{r+3}], v14 offset:{w*4608 + (6+t)*512}')
    VBF = T0 + 48
    for t in range(3):
        k(f's_waitcnt lgkmcnt({(2-t)*4})')
        r = T0 + t*16
        k(f'v_pk_add_f32 v[{r}:{r+1}], v[{r}:{r+1}], v[{r+4}:{r+5}]')
        k(f'v_pk_add_f32 v[{r+2}:{r+3}], v[{r+2}:{r+3}], v[{r+6}:{r+7}]')
        k(f'v_pk_add_f32 v[{r}:{r+1}], v[{r}:{r+1}], v[{r+8}:{r+9}]')
        k(f'v_pk_add_f32 v[{r+2}:{r+3}], v[{r+2}:{r+3}], v[{r+10}:{r+11}]')
        k(f'v_pk_add_f32 v[{r}:{r+1}], v[{r}:{r+1}], v[{r+12}:{r+13}]')
        k(f'v_pk_add_f32 v[{r+2}:{r+3}], v[{r+2}:{r+3}], v[{r+14}:{r+15}]')
        k(f'v_cvt_pk_bf16_f32 v{VBF+2*t}, v{r}, v{r+1}')
        k(f'v_cvt_pk_bf16_f32 v{VBF+2*t+1}, v{r+2}, v{r+3}')
    k(f's_mul_i32 s46, s42, {32*3072}')
    k(f's_mul_i32 s49, s43, {32*3072}')
    k('s_mov_b32 exec_lo, -1'); k('s_mov_b32 exec_hi, 0')
    k(f's_cmp_eq_u32 s40, {NSTEP-1}')
    k('s_cbranch_scc1 K3_w2_last')
    for t in range(3): k(f'buffer_store_dwordx2 v[{VBF+2*t}:{VBF+2*t+1}], v18, s[8:11], s46 offen offset:{256*t}')
    for t in range(3): k(f'buffer_store_dwordx2 v[48:49], v18, s[8:11], s49 offen offset:{256*t}')
    k('K3_w2_last:')
    for t in range(3): k(f'buffer_store_dwordx2 v[{VBF+2*t}:{VBF+2*t+1}], v19, s[8:11], s47 offen offset:{256*t}')
    k('s_mov_b64 exec, -1')
    k(f's_cmp_eq_u32 s40, {NSTEP-1}')
    k('s_cbranch_scc1 K3_b2')
    ts(7)
    k('K3_pv:')
    for c in range(3): k(f'buffer_load_dwordx4 v[{T0+4*c}:{T0+4*c+3}], v26, s[8:11], s46 offen offset:{1024*c} sc1')
    k('s_waitcnt vmcnt(0)')
    maxtree(k, range(T0, T0+12), T0+12)
    k(f'''
v_cmp_eq_u32 vcc, -1, v{T0+12}
s_cbranch_vccz K3_pv_ok
s_add_u32 s41, s41, 1
s_cmp_lt_u32 s41, {SPIN_LIMIT}
s_cbranch_scc1 K3_pv
K3_pv_ok:
''')
    ts(8)
    for c in range(3): k(f'ds_write_b128 v27, v[{T0+4*c}:{T0+4*c+3}] offset:{L_VML + 1024*c}')
    k('s_branch K3_b2')
    k('K3_w1:')
    k(f's_cmp_eq_u32 s40, {NSTEP-1}')
    k('s_cbranch_scc1 K3_b2')
    k(f's_mul_i32 s46, s42, {32*4*1536}')
    k('K3_p1:')
    for g in range(4):
        r = T0 + 8*g
        k(f's_add_u32 s48, s46, {g*1536}')
        k(f'buffer_load_dwordx4 v[{r}:{r+3}], v20, s[8:11], s48 offen sc1')
        k(f'buffer_load_dword v{r+4}, v45, s[8:11], s48 offen sc1')
    k('s_waitcnt vmcnt(0)')
    S = T0
    for g in range(1, 4):
        r = T0 + 8*g
        k(f'v_pk_add_f32 v[{S}:{S+1}], v[{S}:{S+1}], v[{r}:{r+1}]')
        k(f'v_pk_add_f32 v[{S+2}:{S+3}], v[{S+2}:{S+3}], v[{r+2}:{r+3}]')
        k(f'v_add_f32 v{S+4}, v{S+4}, v{r+4}')
    t1, t2 = T0+40, T0+41
    k(f'v_add_f32 v{t1}, v{S}, v{S+1}')
    k(f'v_add_f32 v{t2}, v{S+2}, v{S+3}')
    k(f'v_add_f32 v{t1}, v{t1}, v{S+4}')
    k(f'v_add_f32 v{t1}, v{t1}, v{t2}')
    k(f'''
v_cmp_u_f32 vcc, v{t1}, v{t1}
s_cbranch_vccz K3_p1_ok
s_add_u32 s41, s41, 1
s_cmp_lt_u32 s41, {SPIN_LIMIT}
s_cbranch_scc1 K3_p1
K3_p1_ok:
''')
    ts(7)
    round_bf16_pair(k, S, S+1, t1); round_bf16_pair(k, S+2, S+3, t1); round_bf16(k, S+4)
    for i in range(5): k(f'v_mul_f32 v{S+i}, 0x3d93cd3a, v{S+i}')
    round_bf16_pair(k, S, S+1, t1); round_bf16_pair(k, S+2, S+3, t1); round_bf16(k, S+4)
    k(f'v_max3_f32 v{t1}, v{S}, v{S+1}, v{S+2}')
    k(f'v_max3_f32 v{t1}, v{t1}, v{S+3}, v{S+4}')
    for dpp in ('quad_perm:[1,0,3,2]', 'quad_perm:[2,3,0,1]', 'row_half_mirror'):
        k(f'v_max_f32_dpp v{t1}, v{t1}, v{t1} {dpp} row_mask:0xf bank_mask:0xf')
    for i in range(5):
        k(f'v_sub_f32 v{S+i}, v{S+i}, v{t1}')
    for i in range(5):
        k(f'v_mul_f32 v{S+i}, 0x3fb8aa3b, v{S+i}')
    for i in range(5):
        k(f'v_exp_f32 v{S+i}, v{S+i}')
    k(f'v_add_f32 v{t1}, v{S}, v{S+1}')
    k(f'v_add_f32 v{t2}, v{S+2}, v{S+3}')
    k(f'v_add_f32 v{t1}, v{t1}, v{S+4}')
    k(f'v_add_f32 v{t1}, v{t1}, v{t2}')
    for dpp in ('quad_perm:[1,0,3,2]', 'quad_perm:[2,3,0,1]', 'row_half_mirror'):
        k(f'v_add_f32_dpp v{t1}, v{t1}, v{t1} {dpp} row_mask:0xf bank_mask:0xf')
    k(f'v_rcp_f32 v{t1}, v{t1}')
    for i in range(5): k(f'v_mul_f32 v{S+i}, v{S+i}, v{t1}')
    k(f'v_cvt_pk_bf16_f32 v{S}, v{S}, v{S+1}')
    k(f'v_cvt_pk_bf16_f32 v{S+2}, v{S+2}, v{S+3}')
    k(f'v_cvt_pk_bf16_f32 v{S+4}, v{S+4}, v{S+4}')
    k(f'ds_write_b16 v21, v{S}')
    k(f'ds_write_b16_d16_hi v22, v{S}')
    k(f'ds_write_b16 v23, v{S+2}')
    k(f'ds_write_b16_d16_hi v24, v{S+2}')
    k(f'ds_write_b16 v25, v{S+4}')
    ts(8)
    k('K3_b2:')
    k(f's_cmp_eq_u32 s40, {NSTEP-1}')
    k('s_cbranch_scc1 K3_end')
    k('s_waitcnt lgkmcnt(0)')
    k('s_barrier')
    ts(2)
    PX = T0; PM = T0+4; VM = T0+6; OA = T0+12
    k(f'ds_read_b128 v[{PX}:{PX+3}], v28')
    k(f'ds_read_b64 v[{PM}:{PM+1}], v29')
    for t in range(3): k(f'ds_read_b64 v[{VM+2*t}:{VM+2*t+1}], v30 offset:{256*t}')
    k('s_waitcnt vmcnt(0) lgkmcnt(0)')
    for t in range(3):
        k(f'v_mfma_f32_16x16x32_bf16 v[{OA+4*t}:{OA+4*t+3}], v[{VX+4*t}:{VX+4*t+3}], v[{PX}:{PX+3}], 0')
    for t in range(3):
        k(f'v_mfma_f32_16x16x16_bf16 v[{OA+4*t}:{OA+4*t+3}], v[{VM+2*t}:{VM+2*t+1}], v[{PM}:{PM+1}], v[{OA+4*t}:{OA+4*t+3}]')
    k('s_add_u32 s50, s40, 1')
    k(f's_mul_i32 s50, s50, {0 if fake else 32*12288}')
    k('s_cmp_eq_u32 s4, 3')
    k('s_cbranch_scc1 K3_novx')
    load_vx('s50')
    k('K3_novx:')
    OB = T0+24
    for t in range(3):
        k(f'v_cvt_pk_bf16_f32 v{OB+2*t}, v{OA+4*t}, v{OA+4*t+1}')
        k(f'v_cvt_pk_bf16_f32 v{OB+2*t+1}, v{OA+4*t+2}, v{OA+4*t+3}')
    k(f's_mov_b32 exec_lo, {N8MASK[0]}'); k(f's_mov_b32 exec_hi, {N8MASK[1]}')
    for t in range(3): k(f'ds_write_b64 v{32+t}, v[{OB+2*t}:{OB+2*t+1}]')
    k('s_mov_b64 exec, -1')
    k('s_waitcnt lgkmcnt(0)')
    k('s_barrier')
    ts(3)
    OFR = T0+32
    for ks in range(6): k(f'ds_read_b128 v[{OFR+4*ks}:{OFR+4*ks+3}], v31 offset:{512*ks}')
    GA = AC
    k(f's_mul_i32 s46, s42, {4*32*8*640}')
    k(f's_mul_i32 s49, s43, {4*32*8*640}')
    for ks in range(6):
        k(f's_waitcnt lgkmcnt({5-ks})')
        for t in range(2):
            a = 180 + (t*6 + ks)*4
            C = '0' if ks == 0 else f'v[{GA+4*t}:{GA+4*t+3}]'
            k(f'v_mfma_f32_16x16x32_bf16 v[{GA+4*t}:{GA+4*t+3}], a[{a}:{a+3}], v[{OFR+4*ks}:{OFR+4*ks+3}], {C}')
    k('s_cmp_lt_u32 s4, 2')
    k('s_cbranch_scc0 K3_g2b')
    for ks in range(6):
        t = 2
        a = 180 + (t*6 + ks)*4
        C = '0' if ks == 0 else f'v[{GA+4*t}:{GA+4*t+3}]'
        k(f'v_mfma_f32_16x16x32_bf16 v[{GA+4*t}:{GA+4*t+3}], a[{a}:{a+3}], v[{OFR+4*ks}:{OFR+4*ks+3}], {C}')
    k(f's_mov_b32 exec_lo, {N8MASK[0]}'); k(f's_mov_b32 exec_hi, {N8MASK[1]}')
    k(f'buffer_store_dwordx4 v[{GA+8}:{GA+11}], v37, s[8:11], s46 offen')
    k(f'buffer_store_dwordx4 v[48:51], v37, s[8:11], s49 offen')
    k('s_mov_b64 exec, -1')
    k('K3_g2b:')
    k(f's_mov_b32 exec_lo, {N8MASK[0]}'); k(f's_mov_b32 exec_hi, {N8MASK[1]}')
    for t in range(2): k(f'buffer_store_dwordx4 v[{GA+4*t}:{GA+4*t+3}], v{35+t}, s[8:11], s46 offen')
    for t in range(2): k(f'buffer_store_dwordx4 v[48:51], v{35+t}, s[8:11], s49 offen')
    k('s_mov_b64 exec, -1')
    ts(4)
    k('s_cmp_eq_u32 s4, 3')
    k('s_cbranch_scc0 K3_next')
    k('K3_pa:')
    for h in range(8):
        k(f's_add_u32 s48, s46, {640*h}')
        k(f'buffer_load_dwordx4 v[{T0+4*h}:{T0+4*h+3}], v38, s[8:11], s48 offen sc1')
    k('s_waitcnt vmcnt(0)')
    for h in range(1, 8):
        k(f'v_pk_add_f32 v[{T0}:{T0+1}], v[{T0}:{T0+1}], v[{T0+4*h}:{T0+4*h+1}]')
        k(f'v_pk_add_f32 v[{T0+2}:{T0+3}], v[{T0+2}:{T0+3}], v[{T0+4*h+2}:{T0+4*h+3}]')
    def nanchk(lab_ok, lab_retry):
        k(f'v_add_f32 v{T0+40}, v{T0}, v{T0+1}')
        k(f'v_add_f32 v{T0+41}, v{T0+2}, v{T0+3}')
        k(f'v_add_f32 v{T0+40}, v{T0+40}, v{T0+41}')
        k(f'''
v_cmp_u_f32 vcc, v{T0+40}, v{T0+40}
s_cbranch_vccz {lab_ok}
s_add_u32 s41, s41, 1
s_cmp_lt_u32 s41, {SPIN_LIMIT}
s_cbranch_scc1 {lab_retry}
{lab_ok}:
''')
    nanchk('K3_pa_ok', 'K3_pa')
    k(f's_mul_i32 s46, s42, {32*4*640}')
    k(f's_mul_i32 s49, s43, {32*4*640}')
    k('s_mov_b32 exec_lo, -1'); k('s_mov_b32 exec_hi, 0xff')
    k(f'buffer_store_dwordx4 v[{T0}:{T0+3}], v40, s[8:11], s46 offen sc1')
    k(f'buffer_store_dwordx4 v[48:51], v40, s[8:11], s49 offen sc1')
    k('s_mov_b64 exec, -1')
    load_vx('s50')
    ts(5)
    k('K3_pb:')
    for x in range(4):
        k(f'buffer_load_dwordx4 v[{T0+4*x}:{T0+4*x+3}], v39, s[8:11], s46 offen offset:{640*x} sc1')
    k('s_waitcnt vmcnt(0)')
    for h in range(1, 4):
        k(f'v_pk_add_f32 v[{T0}:{T0+1}], v[{T0}:{T0+1}], v[{T0+4*h}:{T0+4*h+1}]')
        k(f'v_pk_add_f32 v[{T0+2}:{T0+3}], v[{T0+2}:{T0+3}], v[{T0+4*h+2}:{T0+4*h+3}]')
    nanchk('K3_pb_ok', 'K3_pb')
    k(f'v_cvt_pk_bf16_f32 v{T0}, v{T0}, v{T0+1}')
    k(f'v_cvt_pk_bf16_f32 v{T0+1}, v{T0+2}, v{T0+3}')
    k('s_mul_i32 s46, s44, 10240')
    k('s_mul_i32 s49, s45, 10240')
    k('s_mov_b32 exec_lo, -1'); k('s_mov_b32 exec_hi, 0xff')
    k(f'buffer_store_dwordx2 v[{T0}:{T0+1}], v41, s[8:11], s46 offen')
    k(f'buffer_store_dwordx2 v[48:49], v41, s[8:11], s49 offen')
    k('s_mov_b64 exec, -1')
    ts(6)
    k('K3_next:')
    k('s_barrier')
    if prof:
        k('s_cmp_eq_u32 s40, 32'); k('s_cbranch_scc0 K3_np')
        k('s_cmp_eq_u32 s5, 0'); k('s_cbranch_scc0 K3_np')
        k('s_cmp_eq_u32 s3, 0'); k('s_cbranch_scc0 K3_np')
        k('s_waitcnt lgkmcnt(0)')
        k('s_mul_i32 s51, s4, 48')
        k('s_add_u32 s51, s51, 64')
        k('s_mov_b64 exec, 1')
        for i in range(9):
            k(f'v_mov_b32 v6, s{60+2*i}')
            k(f'v_mov_b32 v7, s51')
            k(f'buffer_store_dword v6, v7, s[12:15], 0 offen offset:{4*i}')
        k('s_mov_b64 exec, -1')
        k('K3_np:')
    k('s_add_u32 s40, s40, 1')
    k('s_branch K3_step')
    k('K3_end:')
    k('s_endpgm')
    return k.finalize(), 512, 256
```

```python
import sys
sys.path.insert(0, 'gen')
from common import *
import k_pre, k_gemm, k_rec, k_post
PROF = '--prof' in sys.argv

def build(kernels, path):
    hdr = ''
    for (lab, fn, gx, blk, lds) in kernels:
        hdr += f'; @launch kernel={lab} grid=({gx},1,1) block=({blk},1,1) lds={lds}\n'
    hdr += '.amdgcn_target "amdgcn-amd-amdhsa--gfx950"\n'
    txt = hdr; desc = ''
    seen = set()
    for (lab, fn, gx, blk, lds) in kernels:
        if lab in seen: continue
        seen.add(lab)
        body, nv, acc = fn()
        txt += kernel_text(lab, body, nv, acc)
        desc += kernel_desc(lab, nv, acc)
    open(path, 'w').write(txt + desc)

KERNELS = [
    ('k0_kernel', k_pre.k0_mod, 128, 256, 9216),
    ('k1_kernel', k_pre.k1_ln1, 128, 256, 1024),
    ('k2_kernel', k_gemm.k2_qkv, 1152, 256, 32768),
    ('k3_kernel', lambda: k_rec.k3_rec(prof=PROF, fake='--fake' in sys.argv), 256, 256, 98304),
    ('k4_kernel', k_post.k4_attn, 512, 256, 0),
    ('k5_kernel', k_post.k5_wo, 240, 256, 32768),
    ('k6_kernel', lambda: k_post.k6_res(False), 128, 256, 1024),
    ('k7_kernel', k_post.k7_ffn1, 192, 256, 32768),
    ('k8_kernel', k_post.k8_down, 240, 256, 32768),
    ('k9_kernel', lambda: k_post.k6_res(True), 128, 256, 1024),
]
if __name__ == '__main__':
    out = sys.argv[1] if len(sys.argv) > 1 else 'all.s'
    build(KERNELS, out)
```
